```python
import torch

def _softmax(x, axis=-1):
    return torch.softmax(x, dim=axis)
def _gelu(x):
    return torch.nn.functional.gelu(x, approximate="tanh")
def _silu(x):
    return torch.nn.functional.silu(x)
def _sigmoid(x):
    return torch.sigmoid(x)
def _layernorm(x, axis=-1, eps=1e-5):
    m = x.mean(dim=axis, keepdim=True)
    v = x.var(dim=axis, keepdim=True, unbiased=False)
    return (x - m) / torch.sqrt(v + eps)
def _scatter_add(tgt, idx, src, axis=0):
    return tgt.clone().index_add_(axis, idx, src)
def _segment_sum(src, seg, n):
    out = torch.zeros((n,) + src.shape[1:], dtype=src.dtype)
    return out.index_add_(0, seg, src)
def _pad(x, pw):
    flat = tuple(v for pair in reversed(pw) for v in pair)
    return torch.nn.functional.pad(x, flat)

kernel_name = 'gather_scatter__edge_featured_mpnn_gatedgcn__graph'

def setup_inputs():

    _w = (lambda a: (lambda t: t.to(torch.bfloat16) if t.is_floating_point() else t)(torch.as_tensor(a)))
    N, deg, D, De = 50000, 16, 64, max(16, 1)
    E = N * deg
    return {
        "x": _w((lambda *s: torch.randn(*s, dtype=torch.bfloat16) * 0.4)(N, D)),
        "e_attr": _w((lambda *s: torch.randn(*s, dtype=torch.bfloat16) * 0.8)(E, De)),
        "src": _w((lambda lo, hi, *s: torch.randint(lo, hi, s))(0, N, E).to(torch.int64)),
        "dst": _w((lambda lo, hi, *s: torch.randint(lo, hi, s))(0, N, E).to(torch.int64)),
        "w_a": _w((lambda *s: torch.randn(*s, dtype=torch.bfloat16) * 0.8)(D, D)),
        "w_b": _w((lambda *s: torch.randn(*s, dtype=torch.bfloat16) * 0.4)(D, D)),
        "w_c": _w((lambda *s: torch.randn(*s, dtype=torch.bfloat16) * 0.8)(De, D)),
        "w_u": _w((lambda *s: torch.randn(*s, dtype=torch.bfloat16) * 0.05)(D, D)),
        "w_v": _w((lambda *s: torch.randn(*s, dtype=torch.bfloat16) * 0.05)(D, D)),
    }

def reference(x, e_attr, src, dst, w_a, w_b, w_c, w_u, w_v):
    N, D = x.shape
    hv = x @ w_v
    g = x[dst] @ w_a + x[src] @ w_b + e_attr @ w_c
    eta = _sigmoid(g)
    denom = _segment_sum(eta, dst, N) + 1e-6
    eta_n = eta / denom[dst]
    agg = _segment_sum(eta_n * hv[src], dst, N)
    z = x @ w_u + agg
    relu_z = torch.where(z > 0, z, 0 * z)
    return x + relu_z
```

```python
def vr(a, n=1):
    return f"v{a}" if n == 1 else f"v[{a}:{a+n-1}]"

def sr(a, n=1):
    return f"s{a}" if n == 1 else f"s[{a}:{a+n-1}]"

def R(a, n=1):
    return list(range(a, a + n))


class Asm:
    def __init__(self):
        self.lines = []
        self.slot = 0
        self.hist = []

    def raw(self, text):
        self.lines.append(text)

    def label(self, name):
        self.lines.append(f"{name}:")

    def comment(self, t):
        self.lines.append(f"    ; {t}")

    def nop(self, n):
        while n > 0:
            k = min(n, 16)
            self.lines.append(f"    s_nop {k-1}")
            self.slot += k
            n -= k

    def fence(self):
        need = 0
        for (s, kind, vw, _vr, sw, ex) in self.hist:
            d = self.slot - s - 1
            if kind == 'mfma':
                need = max(need, 8 - d)
            elif kind in ('valu', 'trans'):
                need = max(need, 5 - d)
        if need > 0:
            self.nop(need)

    def _need(self, kind, vw, vrd, sr_, flags):
        need = 0
        vw = set(vw); vrd = set(vrd); sr_ = set(sr_)
        for (s, k, pvw, pvr, psw, ex) in self.hist:
            d = self.slot - s - 1
            if d >= 20:
                continue
            req = 0
            pvw_s = set(pvw)
            if k in ('valu', 'trans'):
                if kind == 'mfma' and (pvw_s & vrd):
                    req = max(req, 2)
                if 'dpp' in flags and (pvw_s & vrd):
                    req = max(req, 2)
                if 'readlane' in flags and (pvw_s & vrd):
                    req = max(req, 1)
                if k == 'trans' and kind in ('valu',) and (pvw_s & vrd):
                    req = max(req, 1)
                if k == 'trans' and kind in ('vmem', 'ds', 'mfma') and (pvw_s & vrd):
                    req = max(req, 2)
                if psw:
                    ps = set(psw)
                    if kind == 'vmem' and (ps & sr_):
                        req = max(req, 5)
                    if kind in ('valu', 'trans') and (ps & sr_):
                        req = max(req, 4 if 'lanesel' in flags else 2)
                if 'wexec' in ex:
                    if 'dpp' in flags:
                        req = max(req, 5)
                    if 'readlane' in flags:
                        req = max(req, 4)
                    if kind == 'mfma':
                        req = max(req, 4)
            if k == 'mfma':
                if kind == 'mfma':
                    ab = set(flags.get('ab', ())) if isinstance(flags, dict) else set()
                    c = flags.get('srcc', ()) if isinstance(flags, dict) else ()
                    if pvw_s & ab:
                        req = max(req, 8)
                    if c and (pvw_s & set(c)):
                        if list(c) == list(pvw):
                            req = max(req, 0)
                        else:
                            req = max(req, 6)
                    if (pvw_s & vw) and not (c and list(c) == list(pvw)):
                        req = max(req, 6)
                else:
                    if pvw_s & (vrd | vw):
                        req = max(req, 8)
                pc = set(ex.get('srcc', ())) if isinstance(ex, dict) else set()
                if kind in ('valu', 'trans') and (pc & vw):
                    req = max(req, 3)
            if k == 'widestore':
                if kind in ('valu', 'trans', 'mfma') and (set(pvr) & vw):
                    req = max(req, 2)
                if kind in ('vmem', 'ds') and (set(pvr) & vw):
                    req = max(req, 1)
            if k == 'm0w' and 'm0r' in flags:
                req = max(req, 1)
            need = max(need, req - d)
        return need

    def ins(self, text, kind='other', vw=(), vrd=(), sw=(), srd=(), flags=None, ex=None):
        flags = flags if flags is not None else {}
        ex = ex if ex is not None else {}
        n = self._need(kind, vw, vrd, srd, flags)
        if n > 0:
            self.nop(n)
        self.lines.append("    " + text)
        self.hist.append((self.slot, kind, tuple(vw), tuple(vrd), tuple(sw), ex))
        self.slot += 1
        if len(self.hist) > 40:
            self.hist = self.hist[-40:]

    def salu(self, text):
        self.ins(text, 'salu')

    def m0(self, text):
        self.ins(text, 'm0w')

    def valu(self, op, d, *srcs, dn=1, mods="", sw=(), trans=False, flags=None, ex=None):
        rd = []; srd = []; txt = []
        for s in srcs:
            if isinstance(s, int):
                rd.append(s); txt.append(vr(s))
            elif isinstance(s, tuple):
                rd += R(s[0], s[1]); txt.append(vr(s[0], s[1]))
            else:
                txt.append(s)
                srd += _sregs(s)
        if d is None:
            dt = None; vw = []
        elif isinstance(d, str):
            dt = d; vw = []; sw = list(sw) + _sregs(d)
        else:
            dt = vr(d, dn); vw = R(d, dn)
        t = op + " " + ", ".join(([dt] if dt else []) + txt) + (" " + mods if mods else "")
        self.ins(t, 'trans' if trans else 'valu', vw, rd, sw, srd, flags or {}, ex or {})

    def mfma(self, d, a, b, c):
        ct = "0" if c is None else vr(c, 4)
        fl = {'ab': R(a, 4) + R(b, 4)}
        if c is not None:
            fl['srcc'] = R(c, 4)
        rd = R(a, 4) + R(b, 4) + (R(c, 4) if c is not None else [])
        self.ins(f"v_mfma_f32_16x16x32_bf16 {vr(d,4)}, {vr(a,4)}, {vr(b,4)}, {ct}", 'mfma', R(d, 4), rd,
                 flags=fl, ex={'srcc': R(c, 4) if c is not None else ()})

    def ds_read(self, op, d, dn, addr, off=0):
        o = f" offset:{off}" if off else ""
        self.ins(f"{op} {vr(d,dn)}, {vr(addr)}{o}", 'ds', R(d, dn), [addr])

    def ds_write(self, op, addr, s, sn=1, off=0):
        o = f" offset:{off}" if off else ""
        self.ins(f"{op} {vr(addr)}, {vr(s,sn)}{o}", 'ds', [], [addr] + R(s, sn))

    def ds_add_rtn(self, d, addr, s, off=0):
        o = f" offset:{off}" if off else ""
        self.ins(f"ds_add_rtn_u32 {vr(d)}, {vr(addr)}, {vr(s)}{o}", 'ds', [d], [addr, s])

    def bload(self, op, d, dn, voff, srd, soff="0", off=0, extra=""):
        o = f" offset:{off}" if off else ""
        self.ins(f"{op} {vr(d,dn)}, {vr(voff)}, {sr(srd,4)}, {soff} offen{o}{extra}", 'vmem', R(d, dn), [voff],
                 srd=R(srd, 4) + _sregs(soff))

    def bload_lds(self, voff, srd, soff="0"):
        self.ins(f"buffer_load_dwordx4 {vr(voff)}, {sr(srd,4)}, {soff} offen lds", 'vmem', [], [voff],
                 srd=R(srd, 4) + _sregs(soff), flags={'m0r': 1})

    def bstore(self, op, s, sn, voff, srd, soff="0", off=0):
        o = f" offset:{off}" if off else ""
        kind = 'widestore' if sn >= 3 else 'vmem'
        n = self._need('vmem', [], [voff] + R(s, sn), R(srd, 4) + _sregs(soff), {})
        if n > 0:
            self.nop(n)
        self.lines.append(f"    {op} {vr(s,sn)}, {vr(voff)}, {sr(srd,4)}, {soff} offen{o}")
        self.hist.append((self.slot, kind, (), tuple(R(s, sn)), (), {}))
        self.slot += 1

    def wait(self, vm=None, lgkm=None):
        p = []
        if vm is not None:
            p.append(f"vmcnt({vm})")
        if lgkm is not None:
            p.append(f"lgkmcnt({lgkm})")
        self.ins("s_waitcnt " + " ".join(p), 'other')

    def barrier(self):
        self.ins("s_barrier", 'other')

    def text(self):
        return "\n".join(self.lines) + "\n"


def _sregs(s):
    s = s.strip()
    if s == 'vcc':
        return [106, 107]
    if s == 'exec':
        return [126, 127]
    if s.startswith('s[') and s.endswith(']'):
        a, b = s[2:-1].split(':')
        return list(range(int(a), int(b) + 1))
    if s.startswith('s') and s[1:].isdigit():
        return [int(s[1:])]
    return []
```

```python
import sys, os
sys.path.insert(0, os.path.dirname(__file__))
from asmlib import Asm, vr, sr, R

N = 50000; E = 800000
G = 250; CH = 3200; NB = 250; NPB = 200
WS_REC = 0
WS_TAB = 6400000
WS_WT = 6660096
WS_ACC = 8 << 20
WS_SIZE = 48 << 20

HEADER = """; Kernarg layout for this problem (96 bytes, ptrs only, base s[0:1]):
; @launch kernel=gp_part_kernel grid=(251,1,1) block=(640,1,1) lds=27648
; @launch kernel=gp_main_kernel grid=(250,1,1) block=(512,1,1) lds={mainlds}
.amdgcn_target "amdgcn-amd-amdhsa--gfx950"
.text
"""

def srd(a, d, base, nbytes):
    a.salu(f"s_mov_b32 s{d}, s{base}")
    a.salu(f"s_and_b32 s{d+1}, s{base+1}, 0xffff")
    a.salu(f"s_mov_b32 s{d+2}, {nbytes}")
    a.salu(f"s_mov_b32 s{d+3}, 0x00020000")


def gen_part():
    a = Asm()
    a.raw(".globl gp_part_kernel\n.p2align 8\n.type gp_part_kernel,@function\ngp_part_kernel:")
    a.salu("s_cmp_gt_u32 s2, 250")
    a.salu("s_cbranch_scc1 P_END")
    a.salu("s_load_dwordx4 s[4:7], s[0:1], 16")
    a.salu("s_load_dwordx2 s[8:9], s[0:1], 88")
    a.salu("s_cmp_eq_u32 s2, 250")
    a.salu("s_cbranch_scc1 P_WEIGHTS")
    a.valu("v_lshlrev_b32", 1, "2", 0)
    a.valu("v_mov_b32", 2, "0")
    a.valu("v_mov_b32", 4, "1")
    a.valu("v_cmp_gt_u32", "vcc", "256", 0)
    a.salu("s_and_saveexec_b64 s[30:31], vcc")
    a.ds_write("ds_write_b32", 1, 2)
    a.salu("s_mov_b64 exec, s[30:31]")
    a.wait(lgkm=0)
    srd(a, 12, 4, E * 4)
    srd(a, 16, 6, E * 4)
    srd(a, 20, 8, WS_SIZE)
    a.salu("s_mul_i32 s3, s2, 12800")
    a.valu("v_add_u32", 3, "s3", 1)
    a.salu("s_mov_b32 s40, 5120")
    a.salu("s_mov_b32 s41, 10240")
    locs = [("0", 0), ("0", 2560), ("s40", 0), ("s40", 2560), ("s41", 0)]
    for k in range(5):
        a.bload("buffer_load_dword", 10 + k, 1, 3, 16, locs[k][0], locs[k][1])
    for k in range(5):
        a.bload("buffer_load_dword", 15 + k, 1, 3, 12, locs[k][0], locs[k][1])
    a.salu("s_mov_b32 s42, 21474837")
    a.valu("v_lshlrev_b32", 9, "3", 3)
    a.barrier()
    a.wait(vm=5)
    for k in range(5):
        d = 10 + k
        a.valu("v_mul_hi_u32", 5, d, "s42")
        a.valu("v_mul_u32_u24", 6, "200", 5)
        a.valu("v_sub_u32", 6, d, 6)
        a.valu("v_lshlrev_b32", 20 + k, "2", 5)
        a.ds_add_rtn(25 + k, 20 + k, 4)
        a.valu("v_lshl_add_u32", 7, 6, "1", "1")
        a.valu("v_mul_u32_u24", 7, "5243", 7)
        a.valu("v_lshrrev_b32", 7, "17", 7)
        a.valu("v_mul_u32_u24", 8, "25", 7)
        a.valu("v_lshrrev_b32", 8, "1", 8)
        a.valu("v_sub_u32", 8, 6, 8)
        a.valu("v_lshlrev_b32", 7, "16", 7)
        a.valu("v_lshl_or_b32", 10 + k, 8, "20", 7)
        a.valu("v_add_u32", 31 + 2 * k, str(k * 20480), 9)
    a.wait(vm=0)
    for k in range(5):
        a.valu("v_or_b32", 30 + 2 * k, 10 + k, 15 + k)
    a.wait(lgkm=0)
    a.barrier()
    a.valu("v_cmp_gt_u32", "vcc", "64", 0)
    a.salu("s_and_saveexec_b64 s[30:31], vcc")
    a.salu("s_cbranch_execz P_SCAN_DONE")
    a.valu("v_lshlrev_b32", 40, "4", 0)
    a.ds_read("ds_read_b128", 44, 4, 40)
    a.wait(lgkm=0)
    a.valu("v_add_u32", 48, 44, 45)
    a.valu("v_add_u32", 49, 48, 46)
    a.valu("v_add_u32", 50, 49, 47)
    a.valu("v_mov_b32", 51, 50)
    for sh in (1, 2, 4, 8):
        a.valu("v_add_u32_dpp", 51, 51, 51, mods=f"row_shr:{sh} row_mask:0xf bank_mask:0xf bound_ctrl:0", flags={'dpp': 1})
    a.valu("v_add_u32_dpp", 51, 51, 51, mods="row_bcast:15 row_mask:0xa bank_mask:0xf", flags={'dpp': 1})
    a.valu("v_add_u32_dpp", 51, 51, 51, mods="row_bcast:31 row_mask:0xc bank_mask:0xf", flags={'dpp': 1})
    a.valu("v_sub_u32", 52, 51, 50)
    a.valu("v_add_u32", 53, 52, 44)
    a.valu("v_add_u32", 54, 52, 48)
    a.valu("v_add_u32", 55, 52, 49)
    a.ds_write("ds_write_b128", 40, 52, 4, off=1024)
    a.salu("s_lshl_b32 s43, s2, 2")
    a.salu(f"s_add_u32 s43, s43, {WS_TAB}")
    a.valu("v_lshlrev_b32", 41, "12", 0)
    a.valu("v_cmp_gt_u32", "vcc", "63", 0)
    a.salu("s_and_b64 exec, exec, vcc")
    for j in range(3):
        a.bstore("buffer_store_dword", 52 + j, 1, 41, 20, "s43", j * 1024)
    a.valu("v_cmp_gt_u32", "vcc", "62", 0)
    a.salu("s_and_b64 exec, exec, vcc")
    a.bstore("buffer_store_dword", 55, 1, 41, 20, "s43", 3072)
    a.wait(lgkm=0)
    a.label("P_SCAN_DONE")
    a.salu("s_mov_b64 exec, s[30:31]")
    a.barrier()
    for k in range(5):
        a.ds_read("ds_read_b32", 44 + k, 1, 20 + k, off=1024)
    a.wait(lgkm=0)
    for k in range(5):
        a.valu("v_add_u32", 5, 44 + k, 25 + k)
        a.valu("v_lshlrev_b32", 5, "3", 5)
        a.ds_write("ds_write_b64", 5, 30 + 2 * k, 2, off=2048)
    a.wait(lgkm=0)
    a.barrier()
    a.valu("v_lshlrev_b32", 5, "4", 0)
    a.salu("s_mul_i32 s44, s2, 25600")
    a.ds_read("ds_read_b128", 44, 4, 5, off=2048)
    a.ds_read("ds_read_b128", 48, 4, 5, off=2048 + 10240)
    a.valu("v_cmp_gt_u32", "vcc", "320", 0)
    a.salu("s_and_saveexec_b64 s[30:31], vcc")
    a.ds_read("ds_read_b128", 52, 4, 5, off=2048 + 20480)
    a.salu("s_mov_b64 exec, s[30:31]")
    a.salu("s_add_u32 s45, s44, 10240")
    a.salu("s_add_u32 s46, s44, 20480")
    a.wait(lgkm=2)
    a.bstore("buffer_store_dwordx4", 44, 4, 5, 20, "s44")
    a.wait(lgkm=1)
    a.bstore("buffer_store_dwordx4", 48, 4, 5, 20, "s45")
    a.wait(lgkm=0)
    a.salu("s_and_saveexec_b64 s[30:31], vcc")
    a.bstore("buffer_store_dwordx4", 52, 4, 5, 20, "s46")
    a.salu("s_endpgm")

    a.label("P_WEIGHTS")
    a.salu("s_load_dwordx4 s[12:15], s[0:1], 32")
    a.salu("s_load_dwordx4 s[16:19], s[0:1], 48")
    a.salu("s_load_dwordx2 s[24:25], s[0:1], 64")
    a.wait(lgkm=0)
    srd(a, 20, 8, WS_SIZE)
    mats = [(12, 0), (14, 8192), (24, 16384), (18, 24576)]
    for mi, (pb, wo) in enumerate(mats):
        srd(a, 28, pb, 8192)
        a.salu(f"s_mov_b32 s40, {WS_WT + wo}")
        for j in range(7):
            a.valu("v_add_u32", 1, str(640 * j), 0)
            a.valu("v_lshlrev_b32", 2, "1", 1)
            a.bload("buffer_load_ushort", 10 + j, 1, 2, 28)
            a.valu("v_and_b32", 3, "63", 1)
            a.valu("v_lshrrev_b32", 4, "6", 1)
            a.valu("v_lshl_add_u32", 3, 3, "6", 4)
            a.valu("v_lshlrev_b32", 20 + j, "1", 3)
        a.wait(vm=0)
        for j in range(7):
            if j == 6:
                a.valu("v_cmp_gt_u32", "vcc", str(4096 - 640 * 6), 0)
                a.salu("s_and_saveexec_b64 s[44:45], vcc")
            a.bstore("buffer_store_short", 10 + j, 1, 20 + j, 20, "s40")
        a.salu("s_mov_b64 exec, s[44:45]")
    srd(a, 28, 16, 2048)
    a.salu(f"s_mov_b32 s40, {WS_WT + 32768}")
    for j in range(2):
        a.valu("v_add_u32", 1, str(640 * j), 0)
        a.valu("v_lshlrev_b32", 2, "1", 1)
        a.bload("buffer_load_ushort", 10 + j, 1, 2, 28)
        a.valu("v_and_b32", 3, "63", 1)
        a.valu("v_lshrrev_b32", 4, "6", 1)
        a.valu("v_lshl_add_u32", 3, 3, "4", 4)
        a.valu("v_lshlrev_b32", 20 + j, "1", 3)
    a.wait(vm=0)
    a.bstore("buffer_store_short", 10, 1, 20, 20, "s40")
    a.valu("v_cmp_gt_u32", "vcc", str(1024 - 640), 0)
    a.salu("s_and_saveexec_b64 s[44:45], vcc")
    a.bstore("buffer_store_short", 11, 1, 21, 20, "s40")
    a.label("P_END")
    a.salu("s_endpgm")
    return a.text()


RMAX = 16
CAP = 500 * RMAX + 512
XSTG = 0
ESTG = 65536
SRC16 = 81920
DL16 = SRC16 + CAP * 2
EOFF = DL16 + CAP * 2
CNT = EOFF + CAP * 4
BASE = CNT + 64
FLAG = BASE + 128
MAINLDS = FLAG + 64

TID, LANE = 0, 1
T = list(range(2, 10))
C_ONE16, C_NEG, C_3F80, NN, NP0, NP1 = 10, 11, 12, 13, 14, 15
SWZA, SWZB, EHALF = 16, 17, 18
VA0, VA1, VE, VDLO, VDLS, VSRC, VEO = 19, 20, 21, 22, 23, 24, 25
PS, PE = 26, 28
D0, D1 = 29, 30
ONE = 31
SD0, SD1 = 32, 34
S_OP = 36
XA = {(0, 0): 40, (0, 1): 44, (1, 0): 48, (1, 1): 52}
EA = [56, 60]
def GH(s):
    b = 64 + 16 * s
    return b, b + 4, b + 8, b + 12
def OPS(s):
    return 96 + 8 * s, 100 + 8 * s
DEN = [112 + 4 * c for c in range(4)]
NUM = [128 + 4 * c for c in range(4)]
WB = {(ks, c): 144 + (ks * 4 + c) * 4 for ks in range(2) for c in range(4)}
WV = {(ks, c): 176 + (ks * 4 + c) * 4 for ks in range(2) for c in range(4)}
W3 = [208 + 4 * c for c in range(4)]
AT1 = 224
DT = list(range(232, 240))
VNT, VROFF, VWOFF, VXT = 240, 241, 242, 243
VQ, VM = 244, 245
VOB = 246
SRD_X, SRD_E, SRD_O, SRD_W = 12, 16, 20, 24
S_W, S_ROUND, S_MORE, S_C128 = 28, 29, 30, 31
S_I, S_N, S_END, S_T01 = 32, 33, 34, 35
S_MX, S_ME = 36, 37
S_NODE0 = 44


def dma_issue(a, ps, pe):
    a.valu("v_mad_u32_u16", DT[0], ps, f"s{S_C128}", SWZA)
    a.valu("v_mad_u32_u16", DT[1], ps, f"s{S_C128}", SWZB, mods="op_sel:[1,0,0,0]")
    a.valu("v_mad_u32_u16", DT[2], ps + 1, f"s{S_C128}", SWZA)
    a.valu("v_mad_u32_u16", DT[3], ps + 1, f"s{S_C128}", SWZB, mods="op_sel:[1,0,0,0]")
    a.valu("v_add_u32", DT[4], pe, EHALF)
    for j in range(4):
        if j == 0:
            a.m0(f"s_mov_b32 m0, s{S_MX}")
        else:
            a.m0(f"s_add_u32 m0, s{S_MX}, {1024*j}")
        a.bload_lds(DT[j], SRD_X)
    a.m0(f"s_mov_b32 m0, s{S_ME}")
    a.bload_lds(DT[4], SRD_E)


def gen_main():
    a = Asm()
    a.raw(".globl gp_main_kernel\n.p2align 8\n.type gp_main_kernel,@function\ngp_main_kernel:")
    a.salu("s_cmp_ge_u32 s2, 250")
    a.salu("s_cbranch_scc1 M_END")
    a.salu("s_load_dwordx4 s[4:7], s[0:1], 0")
    a.salu("s_load_dwordx2 s[8:9], s[0:1], 72")
    a.salu("s_load_dwordx2 s[10:11], s[0:1], 88")
    a.valu("v_and_b32", LANE, "63", TID)
    a.valu("v_lshrrev_b32", T[0], "6", TID)
    a.valu("v_readfirstlane_b32", f"s{S_W}", T[0], flags={'readlane': 1})
    a.valu("v_lshrrev_b32", VQ, "4", LANE)
    a.valu("v_and_b32", VM, "15", LANE)
    a.valu("v_mov_b32", ONE, "1")
    a.valu("v_mov_b32", C_ONE16, "0x00010001")
    a.valu("v_mov_b32", C_NEG, "0xC080C080")
    a.valu("v_mov_b32", C_3F80, "0x3F803F80")
    a.valu("v_mul_u32_u24", NN, "0x10001", VM)
    a.valu("v_lshlrev_b32", T[1], "2", VQ)
    a.valu("v_mul_u32_u24", NP0, "0x10001", T[1])
    a.valu("v_add_u32", NP1, "0x00030002", NP0)
    a.valu("v_add_u32", NP0, "0x00010000", NP0)
    a.valu("v_and_b32", T[2], "7", LANE)
    a.valu("v_xor_b32", T[3], T[2], VQ)
    a.valu("v_lshlrev_b32", SWZA, "4", T[3])
    a.valu("v_xor_b32", SWZB, "64", SWZA)
    a.valu("v_and_b32", T[2], "1", LANE)
    a.valu("v_lshlrev_b32", EHALF, "4", T[2])
    a.salu(f"s_mov_b32 s{S_C128}, 128")
    a.salu(f"s_mov_b32 s{S_ROUND}, 0")
    a.valu("v_lshlrev_b32", T[2], "4", VQ)
    a.valu("v_lshl_add_u32", VWOFF, VM, "7", T[2])
    a.valu("v_lshlrev_b32", T[2], "9", VQ)
    a.valu("v_lshl_add_u32", VOB, VM, "1", T[2])
    a.valu("v_mov_b32", T[4], "0")
    a.valu("v_lshlrev_b32", T[5], "2", TID)
    a.valu("v_add_u32", T[5], str(CNT), T[5])
    a.valu("v_cmp_gt_u32", "vcc", "64", TID)
    a.salu("s_and_saveexec_b64 s[40:41], vcc")
    a.ds_write("ds_write_b32", T[5], T[4])
    a.salu("s_mov_b64 exec, s[40:41]")
    a.wait(lgkm=0)
    srd(a, SRD_X, 4, N * 128)
    srd(a, SRD_E, 6, E * 32)
    srd(a, SRD_O, 8, N * 128)
    srd(a, SRD_W, 10, WS_SIZE)
    a.valu("v_lshrrev_b32", T[0], "1", TID)
    a.valu("v_lshlrev_b32", T[1], "2", T[0])
    a.salu("s_lshl_b32 s38, s2, 10")
    a.salu(f"s_add_u32 s38, s38, {WS_TAB}")
    a.bload("buffer_load_dword", T[2], 1, T[1], SRD_W, "s38", 0)
    a.bload("buffer_load_dword", T[3], 1, T[1], SRD_W, "s38", 1024)
    def wloads(dst, mbase):
        for c in range(4):
            if c % 2 == 0:
                a.salu(f"s_mov_b32 s39, {WS_WT + mbase + (c // 2) * 4096}")
            for ks in range(2):
                a.bload("buffer_load_dwordx4", dst[(ks, c)], 4, VWOFF, SRD_W, "s39", (c & 1) * 2048 + ks * 64)
    wloads(WB, 8192)
    wloads(WV, 16384)
    a.valu("v_lshlrev_b32", T[4], "3", VQ)
    a.valu("v_lshl_add_u32", T[4], VM, "5", T[4])
    a.salu(f"s_mov_b32 s39, {WS_WT + 32768}")
    for c in range(4):
        a.bload("buffer_load_dwordx2", W3[c], 2, T[4], SRD_W, "s39", c * 512)
    a.salu("s_mul_i32 s42, s2, 200")
    a.salu(f"s_mul_i32 s43, s{S_W}, 25")
    a.salu("s_add_u32 s42, s42, s43")
    a.salu("s_lshl_b32 s46, s42, 7")
    a.salu("s_add_u32 s47, s46, 1536")
    a.wait(vm=20)
    a.valu("v_sub_u32", T[3], T[3], T[2])
    a.valu("v_cmp_gt_u32", "vcc", "500", TID)
    a.valu("v_cndmask_b32", T[3], "0", T[3], "vcc")
    a.valu("v_and_b32", T[4], "1", TID)
    a.valu("v_add_u32", T[5], "1", T[3])
    a.valu("v_sub_u32", T[5], T[5], T[4])
    a.valu("v_lshrrev_b32", VNT, "1", T[5])
    a.valu("v_mul_u32_u24", T[5], "3200", T[0])
    a.valu("v_add3_u32", T[5], T[5], T[2], T[4])
    a.valu("v_lshlrev_b32", VROFF, "3", T[5])

    REC = 40; RANK = 72; BS = 88
    WA = {(ks, c): 112 + (ks * 4 + c) * 4 for ks in range(2) for c in range(4)}
    XT = [[104, 108], [248, 252]]
    a.label("M_ROUND")
    for i in range(RMAX):
        a.valu("v_cmpx_lt_u32", "vcc", str(i), VNT, ex={'wexec': 1})
        a.salu("s_cbranch_execz M_LD_DONE")
        a.bload("buffer_load_dwordx2", REC + 2 * i, 2, VROFF, SRD_W, "0", 16 * i)
    a.label("M_LD_DONE")
    a.salu("s_mov_b64 exec, -1")
    wloads(WA, 0)
    for t in range(2):
        for ks in range(2):
            a.bload("buffer_load_dwordx4", XT[t][ks], 4, VWOFF, SRD_X, f"s{46+t}", ks * 64)
    a.wait(vm=0)
    for t in range(2):
        for c in range(4):
            a.mfma(224 + 4 * c, XT[t][0], WA[(0, c)], None)
        for c in range(4):
            a.mfma(224 + 4 * c, XT[t][1], WA[(1, c)], 224 + 4 * c)
        for c in range(4):
            if t == 0:
                a.valu("v_cvt_pk_bf16_f32", W3[c] + 2, 224 + 4 * c, 225 + 4 * c)
                a.valu("v_cvt_pk_bf16_f32", W3[c] + 3, 226 + 4 * c, 227 + 4 * c)
            else:
                a.valu("v_cvt_pk_bf16_f32", AT1 + 2 * c, 224 + 4 * c, 225 + 4 * c)
                a.valu("v_cvt_pk_bf16_f32", AT1 + 2 * c + 1, 226 + 4 * c, 227 + 4 * c)
    a.barrier()
    a.salu(f"s_mov_b32 s38, {CNT}")
    for i in range(RMAX):
        a.valu("v_cmpx_lt_u32", "vcc", str(i), VNT, ex={'wexec': 1})
        a.salu("s_cbranch_execz M_AT_DONE")
        a.valu("v_bfe_u32", T[0], REC + 2 * i, "16", "4")
        a.valu("v_lshl_add_u32", BS + i, T[0], "2", "s38")
        a.ds_add_rtn(RANK + i, BS + i, ONE)
    a.valu("v_cmpx_lt_u32", "vcc", str(RMAX), VNT, ex={'wexec': 1})
    a.salu("s_cbranch_execz M_AT_DONE")
    a.valu("v_mov_b32", T[0], str(FLAG))
    a.ds_write("ds_write_b32", T[0], ONE)
    a.label("M_AT_DONE")
    a.salu("s_mov_b64 exec, -1")
    a.wait(lgkm=0)
    a.barrier()
    a.valu("v_lshl_add_u32", T[0], VM, "2", "s38")
    a.ds_read("ds_read_b32", T[1], 1, T[0])
    a.valu("v_mov_b32", T[5], str(FLAG))
    a.ds_read("ds_read_b32", T[5], 1, T[5])
    a.wait(lgkm=0)
    a.valu("v_readfirstlane_b32", f"s{S_MORE}", T[5], flags={'readlane': 1})
    a.valu("v_add_u32", T[2], "31", T[1])
    a.valu("v_and_b32", T[2], "-32", T[2])
    a.valu("v_mov_b32", T[3], T[2])
    for sh in (1, 2, 4, 8):
        a.valu("v_add_u32_dpp", T[3], T[3], T[3], mods=f"row_shr:{sh} row_mask:0xf bank_mask:0xf bound_ctrl:0", flags={'dpp': 1})
    a.valu("v_sub_u32", T[3], T[3], T[2])
    a.ds_write("ds_write_b32", T[0], T[3], off=BASE - CNT)
    a.salu(f"s_lshl_b32 s39, s{S_W}, 1")
    a.salu("s_add_u32 s48, s39, 1")
    a.valu("v_readlane_b32", "s49", T[3], "s39", flags={'readlane': 1})
    a.valu("v_readlane_b32", "s50", T[2], "s39", flags={'readlane': 1})
    a.valu("v_readlane_b32", "s51", T[2], "s48", flags={'readlane': 1})
    a.wait(lgkm=0)
    a.valu("v_lshrrev_b32", T[0], "5", TID)
    a.valu("v_lshl_add_u32", T[0], T[0], "2", "s38")
    a.ds_read("ds_read_b32", T[1], 1, T[0])
    a.ds_read("ds_read_b32", T[2], 1, T[0], off=BASE - CNT)
    for i in range(RMAX):
        a.valu("v_cmpx_lt_u32", "vcc", str(i), VNT, ex={'wexec': 1})
        a.salu("s_cbranch_execz M_BS_DONE")
        a.ds_read("ds_read_b32", BS + i, 1, BS + i, off=BASE - CNT)
    a.label("M_BS_DONE")
    a.salu("s_mov_b64 exec, -1")
    a.wait(lgkm=0)
    a.salu(f"s_mov_b32 s52, {SRC16}")
    a.salu(f"s_mov_b32 s53, {DL16}")
    a.salu(f"s_mov_b32 s54, {EOFF}")
    a.salu("s_mov_b32 s59, 0xffffffe0")

    def place(pos, w0, dl, w1):
        a.valu("v_and_b32", T[4], "7", pos)
        a.valu("v_bfe_u32", T[5], pos, "3", "2")
        a.valu("v_lshl_or_b32", T[4], T[4], "2", T[5])
        a.valu("v_and_or_b32", T[4], pos, "s59", T[4])
        a.valu("v_lshl_add_u32", T[4], T[4], "1", "s52")
        a.ds_write("ds_write_b16", T[4], w0)
        a.valu("v_lshl_add_u32", T[5], pos, "1", "s53")
        a.ds_write("ds_write_b16", T[5], dl)
        a.valu("v_lshl_add_u32", T[6], pos, "2", "s54")
        a.ds_write("ds_write_b32", T[6], w1)

    a.valu("v_and_b32", T[3], "31", TID)
    a.valu("v_add_u32", T[3], T[3], T[1])
    a.valu("v_add_u32", T[1], "31", T[1])
    a.valu("v_and_b32", T[1], "-32", T[1])
    a.valu("v_cmp_lt_u32", "vcc", T[3], T[1])
    a.valu("v_add_u32", T[3], T[3], T[2])
    a.valu("v_mov_b32", T[0], "0")
    a.valu("v_mov_b32", T[1], "0xff")
    a.salu("s_and_saveexec_b64 s[40:41], vcc")
    place(T[3], T[0], T[1], T[0])
    a.salu("s_mov_b64 exec, s[40:41]")
    for i in range(RMAX):
        a.valu("v_cmpx_lt_u32", "vcc", str(i), VNT, ex={'wexec': 1})
        a.salu("s_cbranch_execz M_PL_DONE")
        a.valu("v_add_u32", T[3], BS + i, RANK + i)
        a.valu("v_bfe_u32", T[7], REC + 2 * i, "20", "4")
        place(T[3], REC + 2 * i, T[7], REC + 2 * i + 1)
    a.label("M_PL_DONE")
    a.salu("s_mov_b64 exec, -1")
    a.wait(lgkm=0)
    a.barrier()

    a.salu(f"s_lshr_b32 s{S_END}, s50, 5")
    a.salu("s_lshr_b32 s51, s51, 5")
    a.salu(f"s_add_u32 s{S_N}, s{S_END}, s51")
    a.salu(f"s_mov_b32 s{S_I}, 0")
    a.salu(f"s_mov_b32 s{S_T01}, 0")
    a.salu(f"s_lshl_b32 s{S_MX}, s{S_W}, 13")
    a.salu(f"s_lshl_b32 s{S_ME}, s{S_W}, 11")
    a.salu(f"s_add_u32 s{S_ME}, s{S_ME}, {ESTG}")
    a.valu("v_lshrrev_b32", T[0], "1", VM)
    a.valu("v_xor_b32", T[0], T[0], VQ)
    a.valu("v_lshlrev_b32", T[0], "4", T[0])
    a.valu("v_lshl_add_u32", T[0], VM, "7", T[0])
    a.valu("v_add_u32", VA0, f"s{S_MX}", T[0])
    a.valu("v_xor_b32", VA1, "64", VA0)
    a.valu("v_lshlrev_b32", T[0], "3", VQ)
    a.valu("v_lshl_add_u32", T[0], VM, "5", T[0])
    a.valu("v_add_u32", VE, f"s{S_ME}", T[0])
    a.salu("s_lshl_b32 s55, s49, 1")
    a.salu("s_add_u32 s56, s55, s53")
    a.valu("v_lshl_add_u32", VDLO, VM, "1", "s56")
    a.valu("v_lshl_add_u32", VDLS, VQ, "3", "s56")
    a.salu("s_add_u32 s56, s55, s52")
    a.valu("v_lshrrev_b32", T[0], "3", LANE)
    a.valu("v_lshl_add_u32", VSRC, T[0], "3", "s56")
    a.salu("s_lshl_b32 s56, s49, 2")
    a.salu("s_add_u32 s56, s56, s54")
    a.valu("v_lshrrev_b32", T[0], "1", LANE)
    a.valu("v_lshl_add_u32", VEO, T[0], "2", "s56")
    a.ds_read("ds_read_b64", PS, 2, VSRC)
    a.ds_read("ds_read_b32", PE, 1, VEO)
    a.ds_read("ds_read_b64", SD0, 2, VSRC, off=64)
    a.ds_read("ds_read_b32", SD1, 1, VEO, off=128)
    a.wait(lgkm=0)
    a.salu(f"s_cmp_eq_u32 s{S_N}, 0")
    a.salu("s_cbranch_scc1 M_PRE_DONE")
    dma_issue(a, PS, PE)
    a.salu(f"s_cmp_eq_u32 s{S_N}, 1")
    a.salu("s_cbranch_scc1 M_PRE_DONE")
    a.salu(f"s_xor_b32 s{S_MX}, s{S_MX}, 4096")
    a.salu(f"s_xor_b32 s{S_ME}, s{S_ME}, 1024")
    dma_issue(a, SD0, SD1)
    a.salu(f"s_xor_b32 s{S_MX}, s{S_MX}, 4096")
    a.salu(f"s_xor_b32 s{S_ME}, s{S_ME}, 1024")
    a.label("M_PRE_DONE")
    a.valu("v_add_u32", VSRC, "128", VSRC)
    a.valu("v_add_u32", VEO, "256", VEO)

    a.label("M_TILE")
    a.salu("s_lshl_b32 s57, s2, 3")
    a.salu(f"s_add_u32 s57, s57, s{S_W}")
    a.salu("s_lshl_b32 s57, s57, 1")
    a.salu(f"s_add_u32 s57, s57, s{S_T01}")
    a.salu("s_lshl_b32 s57, s57, 13")
    a.salu(f"s_add_u32 s57, s57, {WS_ACC}")
    a.salu(f"s_cmp_eq_u32 s{S_ROUND}, 0")
    a.salu("s_cbranch_scc0 M_ACC_LOAD")
    for r in range(112, 144):
        a.valu("v_mov_b32", r, "0")
    a.salu("s_branch M_ACC_DONE")
    a.label("M_ACC_LOAD")
    a.valu("v_lshlrev_b32", T[0], "2", LANE)
    a.salu("s_add_u32 s58, s57, 4096")
    for r in range(32):
        a.bload("buffer_load_dword", 112 + r, 1, T[0], SRD_W, "s57" if r < 16 else "s58", (r % 16) * 256)
    a.wait(vm=0)
    a.label("M_ACC_DONE")
    a.salu(f"s_cmp_ge_u32 s{S_I}, s{S_END}")
    a.salu("s_cbranch_scc1 M_TILE_END")

    a.label("M_GROUP")
    a.salu(f"s_add_u32 s38, s{S_I}, 1")
    a.salu(f"s_cmp_lt_u32 s38, s{S_N}")
    a.salu("s_cbranch_scc1 M_W5")
    a.wait(vm=0)
    a.salu("s_branch M_W0")
    a.label("M_W5")
    a.wait(vm=5)
    a.label("M_W0")
    a.ds_read("ds_read_b128", XA[(0, 0)], 4, VA0)
    a.ds_read("ds_read_b128", XA[(0, 1)], 4, VA1)
    a.ds_read("ds_read_b128", XA[(1, 0)], 4, VA0, off=2048)
    a.ds_read("ds_read_b128", XA[(1, 1)], 4, VA1, off=2048)
    a.ds_read("ds_read_b64", EA[0], 2, VE)
    a.ds_read("ds_read_b64", EA[1], 2, VE, off=512)
    a.ds_read("ds_read_u16", D0, 1, VDLO)
    a.ds_read("ds_read_u16", D1, 1, VDLO, off=32)
    a.ds_read("ds_read_b64", SD0, 2, VDLS)
    a.ds_read("ds_read_b64", SD1, 2, VDLS, off=32)
    a.ds_read("ds_read_b64", PS, 2, VSRC)
    a.ds_read("ds_read_b32", PE, 1, VEO)
    a.valu("v_xor_b32", VA0, "0x1000", VA0)
    a.valu("v_xor_b32", VA1, "0x1000", VA1)
    a.valu("v_xor_b32", VE, "0x400", VE)
    a.valu("v_add_u32", VDLO, "64", VDLO)
    a.valu("v_add_u32", VDLS, "64", VDLS)
    a.valu("v_add_u32", VSRC, "64", VSRC)
    a.valu("v_add_u32", VEO, "0x80", VEO)
    a.wait(lgkm=0)
    a.salu(f"s_add_u32 s38, s{S_I}, 2")
    a.salu(f"s_cmp_lt_u32 s38, s{S_N}")
    a.salu("s_cbranch_scc0 M_NODMA")
    dma_issue(a, PS, PE)
    a.label("M_NODMA")
    a.salu(f"s_xor_b32 s{S_MX}, s{S_MX}, 4096")
    a.salu(f"s_xor_b32 s{S_ME}, s{S_ME}, 1024")
    for h, d in ((0, D0), (1, D1)):
        a.valu("v_mul_u32_u24", d, "0x10001", d)
        for k, npx in ((2, NP0), (3, NP1)):
            a.valu("v_xor_b32", EA[h] + k, d, npx)
            a.valu("v_pk_min_u16", EA[h] + k, EA[h] + k, C_ONE16)
            a.valu("v_pk_mad_u16", EA[h] + k, EA[h] + k, C_NEG, C_3F80)
    for k, s in enumerate((SD0, SD0 + 1, SD1, SD1 + 1)):
        a.valu("v_xor_b32", S_OP + k, s, NN)
        a.valu("v_pk_min_u16", S_OP + k, S_OP + k, C_ONE16)
        a.valu("v_pk_mad_u16", S_OP + k, S_OP + k, C_NEG, C_3F80)

    def mf_list(c):
        g0, g1, h0, h1 = GH(c & 1)
        return [
            (g0, XA[(0, 0)], WB[(0, c)], None), (g1, XA[(1, 0)], WB[(0, c)], None),
            (h0, XA[(0, 0)], WV[(0, c)], None), (h1, XA[(1, 0)], WV[(0, c)], None),
            (g0, XA[(0, 1)], WB[(1, c)], g0), (g1, XA[(1, 1)], WB[(1, c)], g1),
            (h0, XA[(0, 1)], WV[(1, c)], h0), (h1, XA[(1, 1)], WV[(1, c)], h1),
            (g0, EA[0], W3[c], g0), (g1, EA[1], W3[c], g1),
        ]

    def va_list(c):
        g0, g1, h0, h1 = GH(c & 1)
        eta, mm = OPS(c & 1)
        gs = R(g0, 4) + R(g1, 4); hs = R(h0, 4) + R(h1, 4)
        ops = []
        for g in gs:
            ops.append(lambda g=g: a.valu("v_mul_f32", g, "0xbfb8aa3b", g))
        for g in gs:
            ops.append(lambda g=g: a.valu("v_exp_f32", g, g, trans=True))
        for g in gs:
            ops.append(lambda g=g: a.valu("v_add_f32", g, "1.0", g))
        for g in gs:
            ops.append(lambda g=g: a.valu("v_rcp_f32", g, g, trans=True))
        for g, h in zip(gs, hs):
            ops.append(lambda g=g, h=h: a.valu("v_mul_f32", h, g, h))
        for k in range(4):
            ops.append(lambda k=k: a.valu("v_cvt_pk_bf16_f32", eta + k, gs[2 * k], gs[2 * k + 1]))
        for k in range(4):
            ops.append(lambda k=k: a.valu("v_cvt_pk_bf16_f32", mm + k, hs[2 * k], hs[2 * k + 1]))
        return ops

    for st in range(5):
        ml = mf_list(st) if st < 4 else []
        vl = va_list(st - 1) if st >= 1 else []
        nm = len(ml)
        per = (len(vl) + max(nm, 1) - 1) // max(nm, 1) if nm else len(vl)
        vi = 0
        for mi in range(nm):
            a.mfma(*ml[mi])
            for _ in range(per):
                if vi < len(vl):
                    vl[vi](); vi += 1
        while vi < len(vl):
            vl[vi](); vi += 1
        if st >= 1:
            c = st - 1
            eta, mm = OPS(c & 1)
            a.mfma(DEN[c], S_OP, eta, DEN[c])
            a.mfma(NUM[c], S_OP, mm, NUM[c])
    a.salu(f"s_add_u32 s{S_I}, s{S_I}, 1")
    a.salu(f"s_cmp_lt_u32 s{S_I}, s{S_END}")
    a.fence()
    a.salu("s_cbranch_scc1 M_GROUP")

    a.label("M_TILE_END")
    a.fence()
    a.salu(f"s_cmp_eq_u32 s{S_MORE}, 0")
    a.salu("s_cbranch_scc1 M_EPI")
    a.valu("v_lshlrev_b32", T[0], "2", LANE)
    a.salu("s_add_u32 s58, s57, 4096")
    for r in range(32):
        a.bstore("buffer_store_dword", 112 + r, 1, T[0], SRD_W, "s57" if r < 16 else "s58", (r % 16) * 256)
    a.salu("s_branch M_TILE_NEXT")
    a.label("M_EPI")
    WU = {(ks, c): 40 + (ks * 4 + c) * 4 for ks in range(2) for c in range(4)}
    UO = [72 + 4 * c for c in range(4)]
    XR = 88
    XE = [104, 108]
    a.salu(f"s_cmp_eq_u32 s{S_T01}, 0")
    a.salu("s_cselect_b32 s58, s46, s47")
    a.salu("s_cselect_b64 s[60:61], 0, -1")
    wloads(WU, 24576)
    for ks in range(2):
        a.bload("buffer_load_dwordx4", XE[ks], 4, VWOFF, SRD_X, "s58", ks * 64)
    for c in range(4):
        for r in range(4):
            a.bload("buffer_load_ushort", XR + 4 * c + r, 1, VOB, SRD_X, "s58", r * 128 + c * 32)
    a.valu("v_cmp_eq_u32", "vcc", "3", VQ)
    a.valu("v_mov_b32", T[2], "0x40000000")
    a.valu("v_cndmask_b32", T[1], "0", T[2], "vcc")
    a.valu("v_add_u32", T[1], T[1], VOB)
    a.valu("v_cndmask_b32", T[0], T[1], VOB, "s[60:61]")
    a.wait(vm=16)
    for c in range(4):
        a.mfma(UO[c], XE[0], WU[(0, c)], None)
    for c in range(4):
        a.mfma(UO[c], XE[1], WU[(1, c)], UO[c])
    for c in range(4):
        for r in range(4):
            a.valu("v_add_f32", DEN[c] + r, "0x358637bd", DEN[c] + r)
    for c in range(4):
        for r in range(4):
            a.valu("v_rcp_f32", DEN[c] + r, DEN[c] + r, trans=True)
    a.wait(vm=0)
    for c in range(4):
        for r in range(4):
            a.valu("v_fma_f32", UO[c] + r, NUM[c] + r, DEN[c] + r, UO[c] + r)
            a.valu("v_max_f32", UO[c] + r, "0", UO[c] + r)
            a.valu("v_lshlrev_b32", XR + 4 * c + r, "16", XR + 4 * c + r)
            a.valu("v_add_f32", UO[c] + r, UO[c] + r, XR + 4 * c + r)
        a.valu("v_cvt_pk_bf16_f32", XR + 4 * c, UO[c], UO[c] + 1)
        a.valu("v_cvt_pk_bf16_f32", XR + 4 * c + 1, UO[c] + 2, UO[c] + 3)
        a.bstore("buffer_store_short", XR + 4 * c, 1, T[0], SRD_O, "s58", c * 32)
        a.bstore("buffer_store_short_d16_hi", XR + 4 * c, 1, T[1], SRD_O, "s58", 128 + c * 32)
        a.bstore("buffer_store_short", XR + 4 * c + 1, 1, T[1], SRD_O, "s58", 256 + c * 32)
        a.bstore("buffer_store_short_d16_hi", XR + 4 * c + 1, 1, T[1], SRD_O, "s58", 384 + c * 32)
    a.label("M_TILE_NEXT")
    a.salu(f"s_cmp_eq_u32 s{S_T01}, 1")
    a.salu("s_cbranch_scc1 M_ROUND_END")
    a.salu(f"s_mov_b32 s{S_T01}, 1")
    a.salu(f"s_mov_b32 s{S_END}, s{S_N}")
    for c in range(4):
        a.valu("v_mov_b32", W3[c] + 2, AT1 + 2 * c)
        a.valu("v_mov_b32", W3[c] + 3, AT1 + 2 * c + 1)
    a.fence()
    a.salu("s_branch M_TILE")

    a.label("M_ROUND_END")
    a.salu(f"s_cmp_eq_u32 s{S_MORE}, 0")
    a.salu("s_cbranch_scc1 M_END")
    a.wait(vm=0, lgkm=0)
    a.barrier()
    a.valu("v_mov_b32", T[4], "0")
    a.valu("v_lshlrev_b32", T[5], "2", TID)
    a.valu("v_add_u32", T[5], str(CNT), T[5])
    a.valu("v_cmp_gt_u32", "vcc", "64", TID)
    a.salu("s_and_saveexec_b64 s[40:41], vcc")
    a.ds_write("ds_write_b32", T[5], T[4])
    a.salu("s_mov_b64 exec, s[40:41]")
    a.valu("v_max_u32", VNT, str(RMAX), VNT)
    a.valu("v_subrev_u32", VNT, str(RMAX), VNT)
    a.valu("v_add_u32", VROFF, str(16 * RMAX), VROFF)
    a.salu(f"s_add_u32 s{S_ROUND}, s{S_ROUND}, 1")
    a.wait(lgkm=0)
    a.fence()
    a.salu("s_branch M_ROUND")
    a.label("M_END")
    a.salu("s_endpgm")
    return a.text()


def kd(name, vg, sg):
    return f""".amdhsa_kernel {name}
  .amdhsa_next_free_vgpr {vg}
  .amdhsa_next_free_sgpr {sg}
  .amdhsa_accum_offset {(vg + 3) // 4 * 4}
  .amdhsa_group_segment_fixed_size 0
  .amdhsa_kernarg_size 96
  .amdhsa_user_sgpr_count 2
  .amdhsa_user_sgpr_kernarg_segment_ptr 1
  .amdhsa_system_sgpr_workgroup_id_x 1
.end_amdhsa_kernel
"""

def main():
    out = HEADER.format(mainlds=MAINLDS)
    out += gen_part()
    out += gen_main()
    out += '.section .rodata,"a"\n.p2align 6\n'
    out += kd("gp_part_kernel", 64, 64)
    out += ".p2align 6\n"
    out += kd("gp_main_kernel", 256, 80)
    path = sys.argv[1] if len(sys.argv) > 1 else "gather_scatter__edge_featured_mpnn_gatedgcn__graph.s"
    open(path, "w").write(out)
    print("wrote", path, len(out), "bytes; main lds", MAINLDS)

if __name__ == "__main__":
    main()
```

```python
def vr(a, n=1):
    return f"v{a}" if n == 1 else f"v[{a}:{a+n-1}]"

def sr(a, n=1):
    return f"s{a}" if n == 1 else f"s[{a}:{a+n-1}]"

def R(a, n=1):
    return list(range(a, a + n))


class Asm:
    def __init__(self):
        self.lines = []
        self.slot = 0
        self.hist = []

    def raw(self, text):
        self.lines.append(text)

    def label(self, name):
        self.lines.append(f"{name}:")

    def comment(self, t):
        self.lines.append(f"    ; {t}")

    def nop(self, n):
        while n > 0:
            k = min(n, 16)
            self.lines.append(f"    s_nop {k-1}")
            self.slot += k
            n -= k

    def fence(self):
        need = 0
        for (s, kind, vw, _vr, sw, ex) in self.hist:
            d = self.slot - s - 1
            if kind == 'mfma':
                need = max(need, (12 if ex.get('big') else 8) - d)
            elif kind in ('valu', 'trans'):
                need = max(need, 5 - d)
        if need > 0:
            self.nop(need)

    def _need(self, kind, vw, vrd, sr_, flags):
        need = 0
        vw = set(vw); vrd = set(vrd); sr_ = set(sr_)
        for (s, k, pvw, pvr, psw, ex) in self.hist:
            d = self.slot - s - 1
            if d >= 20:
                continue
            req = 0
            pvw_s = set(pvw)
            if k in ('valu', 'trans'):
                if kind == 'mfma' and (pvw_s & vrd):
                    req = max(req, 2)
                if 'dpp' in flags and (pvw_s & vrd):
                    req = max(req, 2)
                if 'readlane' in flags and (pvw_s & vrd):
                    req = max(req, 1)
                if k == 'trans' and kind in ('valu',) and (pvw_s & vrd):
                    req = max(req, 1)
                if k == 'trans' and kind in ('vmem', 'ds', 'mfma') and (pvw_s & vrd):
                    req = max(req, 2)
                if psw:
                    ps = set(psw)
                    if kind == 'vmem' and (ps & sr_):
                        req = max(req, 5)
                    if kind in ('valu', 'trans') and (ps & sr_):
                        req = max(req, 4 if 'lanesel' in flags else 2)
                if 'wexec' in ex:
                    if 'dpp' in flags:
                        req = max(req, 5)
                    if 'readlane' in flags:
                        req = max(req, 4)
                    if kind == 'mfma':
                        req = max(req, 4)
            if k == 'mfma':
                big = ex.get('big')
                RAW = 12 if big else 8
                OVL = 10 if big else 6
                WAR = 7 if big else 3
                if kind == 'mfma':
                    ab = set(flags.get('ab', ())) if isinstance(flags, dict) else set()
                    c = flags.get('srcc', ()) if isinstance(flags, dict) else ()
                    if pvw_s & ab:
                        req = max(req, RAW)
                    if c and (pvw_s & set(c)):
                        if list(c) == list(pvw):
                            req = max(req, 0)
                        else:
                            req = max(req, OVL)
                    if (pvw_s & vw) and not (c and list(c) == list(pvw)):
                        req = max(req, OVL)
                else:
                    if pvw_s & (vrd | vw):
                        req = max(req, RAW)
                pc = set(ex.get('srcc', ())) if isinstance(ex, dict) else set()
                if kind in ('valu', 'trans') and (pc & vw):
                    req = max(req, WAR)
            if k == 'widestore':
                if kind in ('valu', 'trans', 'mfma') and (set(pvr) & vw):
                    req = max(req, 2)
                if kind in ('vmem', 'ds') and (set(pvr) & vw):
                    req = max(req, 1)
            if k == 'm0w' and 'm0r' in flags:
                req = max(req, 1)
            need = max(need, req - d)
        return need

    def ins(self, text, kind='other', vw=(), vrd=(), sw=(), srd=(), flags=None, ex=None):
        flags = flags if flags is not None else {}
        ex = ex if ex is not None else {}
        n = self._need(kind, vw, vrd, srd, flags)
        if n > 0:
            self.nop(n)
        self.lines.append("    " + text)
        self.hist.append((self.slot, kind, tuple(vw), tuple(vrd), tuple(sw), ex))
        self.slot += 1
        if len(self.hist) > 40:
            self.hist = self.hist[-40:]

    def salu(self, text):
        self.ins(text, 'salu')

    def m0(self, text):
        self.ins(text, 'm0w')

    def valu(self, op, d, *srcs, dn=1, mods="", sw=(), trans=False, flags=None, ex=None):
        rd = []; srd = []; txt = []
        for s in srcs:
            if isinstance(s, int):
                rd.append(s); txt.append(vr(s))
            elif isinstance(s, tuple):
                rd += R(s[0], s[1]); txt.append(vr(s[0], s[1]))
            else:
                txt.append(s)
                srd += _sregs(s)
        if d is None:
            dt = None; vw = []
        elif isinstance(d, str):
            dt = d; vw = []; sw = list(sw) + _sregs(d)
        else:
            dt = vr(d, dn); vw = R(d, dn)
        t = op + " " + ", ".join(([dt] if dt else []) + txt) + (" " + mods if mods else "")
        self.ins(t, 'trans' if trans else 'valu', vw, rd, sw, srd, flags or {}, ex or {})

    def mfma(self, d, a, b, c):
        ct = "0" if c is None else vr(c, 4)
        fl = {'ab': R(a, 4) + R(b, 4)}
        if c is not None:
            fl['srcc'] = R(c, 4)
        rd = R(a, 4) + R(b, 4) + (R(c, 4) if c is not None else [])
        self.ins(f"v_mfma_f32_16x16x32_bf16 {vr(d,4)}, {vr(a,4)}, {vr(b,4)}, {ct}", 'mfma', R(d, 4), rd,
                 flags=fl, ex={'srcc': R(c, 4) if c is not None else ()})

    def mfma32(self, d, a, b, c):
        ct = "0" if c is None else vr(c, 16)
        fl = {'ab': R(a, 4) + R(b, 4)}
        if c is not None:
            fl['srcc'] = R(c, 16)
        rd = R(a, 4) + R(b, 4) + (R(c, 16) if c is not None else [])
        self.ins(f"v_mfma_f32_32x32x16_bf16 {vr(d,16)}, {vr(a,4)}, {vr(b,4)}, {ct}", 'mfma', R(d, 16), rd,
                 flags=fl, ex={'srcc': R(c, 16) if c is not None else (), 'big': 1})

    def ds_read(self, op, d, dn, addr, off=0):
        o = f" offset:{off}" if off else ""
        self.ins(f"{op} {vr(d,dn)}, {vr(addr)}{o}", 'ds', R(d, dn), [addr])

    def ds_write(self, op, addr, s, sn=1, off=0):
        o = f" offset:{off}" if off else ""
        self.ins(f"{op} {vr(addr)}, {vr(s,sn)}{o}", 'ds', [], [addr] + R(s, sn))

    def ds_add_rtn(self, d, addr, s, off=0):
        o = f" offset:{off}" if off else ""
        self.ins(f"ds_add_rtn_u32 {vr(d)}, {vr(addr)}, {vr(s)}{o}", 'ds', [d], [addr, s])

    def bload(self, op, d, dn, voff, srd, soff="0", off=0, extra=""):
        o = f" offset:{off}" if off else ""
        self.ins(f"{op} {vr(d,dn)}, {vr(voff)}, {sr(srd,4)}, {soff} offen{o}{extra}", 'vmem', R(d, dn), [voff],
                 srd=R(srd, 4) + _sregs(soff))

    def bload_lds(self, voff, srd, soff="0", extra=""):
        self.ins(f"buffer_load_dwordx4 {vr(voff)}, {sr(srd,4)}, {soff} offen{extra} lds", 'vmem', [], [voff],
                 srd=R(srd, 4) + _sregs(soff), flags={'m0r': 1})

    def bstore(self, op, s, sn, voff, srd, soff="0", off=0, extra=""):
        o = (f" offset:{off}" if off else "") + extra
        kind = 'widestore' if sn >= 3 else 'vmem'
        n = self._need('vmem', [], [voff] + R(s, sn), R(srd, 4) + _sregs(soff), {})
        if n > 0:
            self.nop(n)
        self.lines.append(f"    {op} {vr(s,sn)}, {vr(voff)}, {sr(srd,4)}, {soff} offen{o}")
        self.hist.append((self.slot, kind, (), tuple(R(s, sn)), (), {}))
        self.slot += 1

    def wait(self, vm=None, lgkm=None):
        p = []
        if vm is not None:
            p.append(f"vmcnt({vm})")
        if lgkm is not None:
            p.append(f"lgkmcnt({lgkm})")
        self.ins("s_waitcnt " + " ".join(p), 'other')

    def barrier(self):
        self.ins("s_barrier", 'other')

    def text(self):
        return "\n".join(self.lines) + "\n"


def _sregs(s):
    s = s.strip()
    if s == 'vcc':
        return [106, 107]
    if s == 'exec':
        return [126, 127]
    if s.startswith('s[') and s.endswith(']'):
        a, b = s[2:-1].split(':')
        return list(range(int(a), int(b) + 1))
    if s.startswith('s') and s[1:].isdigit():
        return [int(s[1:])]
    return []
```

```python
import sys, os
sys.path.insert(0, os.path.dirname(__file__))
from asmlib import Asm, vr, sr, R

N = 50000; E = 800000
G = 250; CH = 3200; NB = 250; NPB = 200
WS_REC = 0
WS_TAB = 6400000
WS_WT = 6660096
WS_SIZE = 8 << 20
INSTR = int(os.environ.get("INSTR", "0"))
NOCOMP = int(os.environ.get("NOCOMP", "0"))
NOMEM = int(os.environ.get("NOMEM", "0"))
PRIO = int(os.environ.get("PRIO", "1"))
ENT = int(os.environ.get("ENT", "0"))
BAL = int(os.environ.get("BAL", "1"))
PK = int(os.environ.get("PK", "0"))

HEADER = """; Kernarg layout for this problem (96 bytes, ptrs only, base s[0:1]):
; @launch kernel=gp_part_kernel grid=(255,1,1) block=(640,1,1) lds=27648
; @launch kernel=gp_main_kernel grid=(250,1,1) block=(512,1,1) lds={mainlds}
.amdgcn_target "amdgcn-amd-amdhsa--gfx950"
.text
"""

def srd(a, d, base, nbytes):
    a.salu(f"s_mov_b32 s{d}, s{base}")
    a.salu(f"s_and_b32 s{d+1}, s{base+1}, 0xffff")
    a.salu(f"s_mov_b32 s{d+2}, {nbytes}")
    a.salu(f"s_mov_b32 s{d+3}, 0x00020000")


def gen_part():
    a = Asm()
    a.raw(".globl gp_part_kernel\n.p2align 8\n.type gp_part_kernel,@function\ngp_part_kernel:")
    a.salu("s_cmp_gt_u32 s2, 254")
    a.salu("s_cbranch_scc1 P_END")
    a.salu("s_load_dwordx4 s[4:7], s[0:1], 16")
    a.salu("s_load_dwordx2 s[8:9], s[0:1], 88")
    a.salu("s_cmp_ge_u32 s2, 250")
    a.salu("s_cbranch_scc1 P_WEIGHTS")
    a.valu("v_lshlrev_b32", 1, "2", 0)
    a.valu("v_mov_b32", 2, "0")
    a.valu("v_mov_b32", 4, "1")
    a.valu("v_cmp_gt_u32", "vcc", "256", 0)
    a.salu("s_and_saveexec_b64 s[30:31], vcc")
    a.ds_write("ds_write_b32", 1, 2)
    a.salu("s_mov_b64 exec, s[30:31]")
    a.wait(lgkm=0)
    srd(a, 12, 4, E * 4)
    srd(a, 16, 6, E * 4)
    srd(a, 20, 8, WS_SIZE)
    a.salu("s_mul_i32 s3, s2, 12800")
    a.valu("v_add_u32", 3, "s3", 1)
    a.salu("s_mov_b32 s40, 5120")
    a.salu("s_mov_b32 s41, 10240")
    locs = [("0", 0), ("0", 2560), ("s40", 0), ("s40", 2560), ("s41", 0)]
    for k in range(5):
        a.bload("buffer_load_dword", 10 + k, 1, 3, 16, locs[k][0], locs[k][1])
    for k in range(5):
        a.bload("buffer_load_dword", 15 + k, 1, 3, 12, locs[k][0], locs[k][1])
    a.salu("s_mov_b32 s42, 21474837")
    a.valu("v_lshlrev_b32", 9, "3", 3)
    a.barrier()
    a.wait(vm=5)
    for k in range(5):
        d = 10 + k
        a.valu("v_mul_hi_u32", 5, d, "s42")
        a.valu("v_mul_u32_u24", 6, "200", 5)
        a.valu("v_sub_u32", 6, d, 6)
        a.valu("v_lshlrev_b32", 20 + k, "2", 5)
        a.ds_add_rtn(25 + k, 20 + k, 4)
        a.valu("v_mul_u32_u24", 7, "41", 6)
        a.valu("v_lshrrev_b32", 7, "10", 7)
        a.valu("v_mul_u32_u24", 8, "25", 7)
        a.valu("v_sub_u32", 8, 6, 8)
        a.valu("v_lshlrev_b32", 10 + k, "16", 7)
        a.valu("v_add3_u32", 31 + 2 * k, 9, 8, "s%d" % (44 + k)) if False else None
        a.valu("v_add_u32", 31 + 2 * k, str(k * 20480), 9)
        a.valu("v_or_b32", 31 + 2 * k, 31 + 2 * k, 8)
    a.wait(vm=0)
    for k in range(5):
        a.valu("v_or_b32", 30 + 2 * k, 10 + k, 15 + k)
    a.wait(lgkm=0)
    a.barrier()
    a.valu("v_cmp_gt_u32", "vcc", "64", 0)
    a.salu("s_and_saveexec_b64 s[30:31], vcc")
    a.salu("s_cbranch_execz P_SCAN_DONE")
    a.valu("v_lshlrev_b32", 40, "4", 0)
    a.ds_read("ds_read_b128", 44, 4, 40)
    a.wait(lgkm=0)
    a.valu("v_add_u32", 48, 44, 45)
    a.valu("v_add_u32", 49, 48, 46)
    a.valu("v_add_u32", 50, 49, 47)
    a.valu("v_mov_b32", 51, 50)
    for sh in (1, 2, 4, 8):
        a.valu("v_add_u32_dpp", 51, 51, 51, mods=f"row_shr:{sh} row_mask:0xf bank_mask:0xf bound_ctrl:0", flags={'dpp': 1})
    a.valu("v_add_u32_dpp", 51, 51, 51, mods="row_bcast:15 row_mask:0xa bank_mask:0xf", flags={'dpp': 1})
    a.valu("v_add_u32_dpp", 51, 51, 51, mods="row_bcast:31 row_mask:0xc bank_mask:0xf", flags={'dpp': 1})
    a.valu("v_sub_u32", 52, 51, 50)
    a.valu("v_add_u32", 53, 52, 44)
    a.valu("v_add_u32", 54, 52, 48)
    a.valu("v_add_u32", 55, 52, 49)
    a.ds_write("ds_write_b128", 40, 52, 4, off=1024)
    a.salu("s_lshl_b32 s43, s2, 2")
    a.salu(f"s_add_u32 s43, s43, {WS_TAB}")
    a.valu("v_lshlrev_b32", 41, "12", 0)
    a.valu("v_cmp_gt_u32", "vcc", "63", 0)
    a.salu("s_and_b64 exec, exec, vcc")
    for j in range(3):
        a.bstore("buffer_store_dword", 52 + j, 1, 41, 20, "s43", j * 1024)
    a.valu("v_cmp_gt_u32", "vcc", "62", 0)
    a.salu("s_and_b64 exec, exec, vcc")
    a.bstore("buffer_store_dword", 55, 1, 41, 20, "s43", 3072)
    a.wait(lgkm=0)
    a.label("P_SCAN_DONE")
    a.salu("s_mov_b64 exec, s[30:31]")
    a.barrier()
    for k in range(5):
        a.ds_read("ds_read_b32", 44 + k, 1, 20 + k, off=1024)
    a.wait(lgkm=0)
    for k in range(5):
        a.valu("v_add_u32", 5, 44 + k, 25 + k)
        a.valu("v_lshlrev_b32", 5, "3", 5)
        a.ds_write("ds_write_b64", 5, 30 + 2 * k, 2, off=2048)
    a.wait(lgkm=0)
    a.barrier()
    a.valu("v_lshlrev_b32", 5, "4", 0)
    a.salu("s_mul_i32 s44, s2, 25600")
    a.ds_read("ds_read_b128", 44, 4, 5, off=2048)
    a.ds_read("ds_read_b128", 48, 4, 5, off=2048 + 10240)
    a.valu("v_cmp_gt_u32", "vcc", "320", 0)
    a.salu("s_and_saveexec_b64 s[30:31], vcc")
    a.ds_read("ds_read_b128", 52, 4, 5, off=2048 + 20480)
    a.salu("s_mov_b64 exec, s[30:31]")
    a.salu("s_add_u32 s45, s44, 10240")
    a.salu("s_add_u32 s46, s44, 20480")
    a.wait(lgkm=2)
    a.bstore("buffer_store_dwordx4", 44, 4, 5, 20, "s44")
    a.wait(lgkm=1)
    a.bstore("buffer_store_dwordx4", 48, 4, 5, 20, "s45")
    a.wait(lgkm=0)
    a.salu("s_and_saveexec_b64 s[30:31], vcc")
    a.bstore("buffer_store_dwordx4", 52, 4, 5, 20, "s46")
    a.salu("s_endpgm")

    a.label("P_WEIGHTS")
    a.salu("s_sub_u32 s3, s2, 250")
    a.salu("s_lshl_b32 s40, s3, 13")
    a.salu(f"s_add_u32 s40, s40, {WS_WT}")
    a.salu("s_mov_b32 s41, 32")
    a.salu("s_cmp_eq_u32 s3, 1")
    a.salu("s_cselect_b32 s41, 40, s41")
    a.salu("s_cmp_eq_u32 s3, 2")
    a.salu("s_cselect_b32 s41, 64, s41")
    a.salu("s_cmp_eq_u32 s3, 3")
    a.salu("s_cselect_b32 s41, 56, s41")
    a.salu("s_cmp_eq_u32 s3, 4")
    a.salu("s_cselect_b32 s41, 48, s41")
    a.salu("s_movk_i32 s42, 0x2000")
    a.salu("s_cselect_b32 s42, 2048, s42")
    a.salu("s_load_dwordx2 s[12:13], s[0:1], s41")
    a.wait(lgkm=0)
    srd(a, 20, 8, WS_SIZE)
    srd(a, 28, 12, 0)
    a.salu("s_mov_b32 s30, s42")
    for j in range(7):
        a.valu("v_add_u32", 1, str(640 * j), 0)
        a.valu("v_lshlrev_b32", 2, "1", 1)
        a.bload("buffer_load_ushort", 10 + j, 1, 2, 28)
        a.valu("v_lshrrev_b32", 3, "10", 1)
        a.valu("v_bfe_u32", 4, 1, "5", "1")
        a.valu("v_lshl_add_u32", 3, 3, "1", 4)
        a.valu("v_bfe_u32", 4, 1, "9", "1")
        a.valu("v_lshl_add_u32", 3, 3, "1", 4)
        a.valu("v_and_b32", 4, "31", 1)
        a.valu("v_lshl_add_u32", 3, 3, "5", 4)
        a.valu("v_bfe_u32", 4, 1, "6", "3")
        a.valu("v_lshl_add_u32", 3, 3, "3", 4)
        a.valu("v_lshlrev_b32", 3, "1", 3)
        a.valu("v_mov_b32", 5, "0x40000000")
        a.valu("v_cmp_gt_u32", "vcc", "s42", 2)
        a.valu("v_cndmask_b32", 20 + j, 5, 3, "vcc")
    a.wait(vm=0)
    for j in range(7):
        a.bstore("buffer_store_short", 10 + j, 1, 20 + j, 20, "s40")
    a.label("P_END")
    a.salu("s_endpgm")
    return a.text()


CAP = 250 * 32 + 256
XSTG = 0
ESTG = 65536
SRC16 = 81920
DLS = SRC16 + CAP * 2
EOFF = DLS + CAP * 2
CNT = EOFF + CAP * 4
TC = CAP // 8
BASE = CNT + 512
PROG = CNT + 1024
FLAG = CNT + 1088
TBL = CNT + 1152
NZERO = 288
WUL = TBL + 2048
MAINLDS = WUL + 8192
WTMP = SRC16

TID = 0
T = list(range(2, 9))
VTB = 9
IDB = [10, 100]
SWZ = [14, 15, 1, 31]
EHALF = 16
VA = [17, 18, 19, 20]
VE, VPROG, VEM, VSRC, VEO = 21, 22, 23, 24, 25
PS, PE, DM, TOH = 26, 28, 29, 30
SD = 32
X = [40, 44, 48, 52]
EOP = 56
OH = [60, 64]
GG, HH = 68, 84
DEN = [104, 120]
NUM = [136, 152]
WB = {(ks, c): 168 + (ks * 2 + c) * 4 for ks in range(4) for c in range(2)}
WV = {(ks, c): 200 + (ks * 2 + c) * 4 for ks in range(4) for c in range(2)}
WC = [232, 236]
AT = {(s, c): 240 + (s * 2 + c) * 4 for s in range(2) for c in range(2)}
SRD_X, SRD_E, SRD_O, SRD_W = 12, 16, 20, 24
S_W, S_ROUND, S_MORE, S_C128 = 28, 29, 30, 31
S_I, S_N = 32, 33
S_MX, S_ME = 36, 37
S_M32 = 59
S_DONE, S_STEP = 34, 35
SMASK = 66


def dma_issue(a, ps, pe):
    a.valu("v_mad_u32_u16", T[0], ps, f"s{S_C128}", SWZ[0])
    a.valu("v_mad_u32_u16", T[1], ps, f"s{S_C128}", SWZ[1], mods="op_sel:[1,0,0,0]")
    a.valu("v_mad_u32_u16", T[2], ps + 1, f"s{S_C128}", SWZ[2])
    a.valu("v_mad_u32_u16", T[3], ps + 1, f"s{S_C128}", SWZ[3], mods="op_sel:[1,0,0,0]")
    a.valu("v_and_or_b32", T[4], pe, f"s{S_M32}", EHALF)
    if NOMEM:
        for j in range(5):
            a.valu("v_and_b32", T[j], "0x3ff", T[j])
    for j in range(4):
        if j == 0:
            a.m0(f"s_mov_b32 m0, s{S_MX}")
        else:
            a.m0(f"s_add_u32 m0, s{S_MX}, {1024*j}")
        a.bload_lds(T[j], SRD_X)
    a.m0(f"s_mov_b32 m0, s{S_ME}")
    a.bload_lds(T[4], SRD_E, extra=" nt" if ENT else "")


def gen_main():
    a = Asm()
    def stamp(k):
        if INSTR:
            a.salu("s_memtime s[98:99]")
            a.wait(lgkm=0)
            a.salu(f"s_mov_b32 s{(44, 45, 100, 101, 60, 61)[k]}, s98")
    a.raw(".globl gp_main_kernel\n.p2align 8\n.type gp_main_kernel,@function\ngp_main_kernel:")
    a.salu("s_cmp_ge_u32 s2, 250")
    a.salu("s_cbranch_scc1 M_END")
    a.salu("s_load_dwordx2 s[10:11], s[0:1], 88")
    a.salu("s_load_dwordx4 s[4:7], s[0:1], 0")
    a.salu("s_load_dwordx2 s[8:9], s[0:1], 72")
    stamp(0)
    LANE, VQ, VM, VHH, VW, VR = 160, 161, 162, 163, 164, 165
    a.valu("v_and_b32", LANE, "63", TID)
    a.valu("v_lshrrev_b32", T[0], "6", TID)
    a.valu("v_readfirstlane_b32", f"s{S_W}", T[0], flags={'readlane': 1})
    a.valu("v_lshlrev_b32", VW, "4", LANE)
    a.valu("v_lshrrev_b32", VQ, "4", LANE)
    a.valu("v_lshrrev_b32", VR, "3", LANE)
    a.salu(f"s_mov_b32 s{S_ROUND}, 0")
    a.salu(f"s_mov_b32 s{S_DONE}, 0")
    a.salu(f"s_mov_b32 s{S_STEP}, 32")
    a.salu(f"s_lshl_b32 s{S_MX}, s{S_W}, 13")
    a.salu("s_mul_i32 s42, s2, 200")
    a.salu(f"s_mul_i32 s43, s{S_W}, 25")
    a.salu("s_add_u32 s42, s42, s43")
    a.salu("s_lshl_b32 s46, s42, 7")
    a.valu("v_and_b32", T[2], "7", LANE)
    a.valu("v_and_b32", T[3], "1", VQ)
    a.valu("v_lshlrev_b32", T[3], "2", T[3])
    a.valu("v_xor_b32", T[3], T[2], T[3])
    a.valu("v_lshlrev_b32", SWZ[0], "4", T[3])
    for j in range(1, 4):
        a.valu("v_xor_b32", SWZ[j], str(16 * j), SWZ[0])
    a.wait(lgkm=0)
    srd(a, SRD_W, 10, WS_SIZE)
    srd(a, SRD_X, 4, N * 128)

    def xtile_dma(vr_):
        a.valu("v_and_b32", T[0], "2", vr_)
        a.valu("v_lshlrev_b32", T[0], "3", T[0])
        a.valu("v_and_b32", T[1], "1", vr_)
        a.valu("v_lshl_add_u32", T[0], T[1], "3", T[0])
        a.valu("v_lshrrev_b32", T[1], "2", vr_)
        a.valu("v_lshl_add_u32", T[0], T[1], "2", T[0])
        a.valu("v_lshlrev_b32", T[0], "7", T[0])
        for j in range(4):
            a.valu("v_add_u32", T[1 + j], T[0], SWZ[j])
        for j in range(4):
            a.salu(f"s_add_u32 s38, s46, {128 * j}")
            if j == 0:
                a.m0(f"s_mov_b32 m0, s{S_MX}")
            else:
                a.m0(f"s_add_u32 m0, s{S_MX}, {1024*j}")
            a.bload_lds(T[1 + j], SRD_X, "s38")

    REC = 40; RANK = 72; BS = 88
    REM = [32, 33, 34, 35]; ROF = [36, 37, 38, 39]
    a.label("M_ROUND")
    a.valu("v_lshrrev_b32", T[0], "3", TID)
    a.valu("v_lshlrev_b32", T[1], "2", T[0])
    a.salu("s_lshl_b32 s38, s2, 10")
    a.salu(f"s_add_u32 s38, s38, {WS_TAB}")
    for p_ in range(4):
        a.bload("buffer_load_dword", ROF[p_], 1, T[1], SRD_W, "s38", 256 * p_)
        a.bload("buffer_load_dword", REM[p_], 1, T[1], SRD_W, "s38", 1024 + 256 * p_)
    a.valu("v_lshrrev_b32", T[0], "3", TID)
    a.valu("v_and_b32", T[2], "7", TID)
    a.valu("v_lshlrev_b32", T[2], "1", T[2])
    a.valu("v_add_u32", T[6], f"s{S_DONE}", T[2])
    a.wait(vm=0)
    stamp(1)
    for p_ in range(4):
        a.valu("v_sub_u32", REM[p_], REM[p_], ROF[p_])
        if p_ == 3:
            a.valu("v_cmp_gt_u32", "vcc", str(250 - 192), T[0])
            a.valu("v_cndmask_b32", REM[p_], "0", REM[p_], "vcc")
        a.valu("v_subrev_u32", REM[p_], f"s{S_DONE}", REM[p_])
        if p_ == 0:
            a.valu("v_mov_b32", T[5], REM[p_])
        else:
            a.valu("v_max_i32", T[5], T[5], REM[p_])
        a.valu("v_min_i32", REM[p_], f"s{S_STEP}", REM[p_])
        a.valu("v_sub_u32", REM[p_], REM[p_], T[2])
        a.valu("v_add_u32", T[3], str(64 * p_), T[0])
        a.valu("v_mul_u32_u24", T[3], "3200", T[3])
        a.valu("v_add3_u32", T[3], T[3], ROF[p_], T[6])
        a.valu("v_lshlrev_b32", ROF[p_], "3", T[3])
    a.valu("v_cmp_lt_i32", "s[40:41]", f"s{S_STEP}", T[5])
    def recs():
        for p_ in range(4):
            for c_ in range(2):
                for h_ in range(2):
                    yield (p_ * 2 + c_) * 2 + h_, p_, 16 * c_ + h_
    for i, p_, K in recs():
        a.valu("v_cmp_lt_i32", f"s[{SMASK+2*i}:{SMASK+2*i+1}]", str(K), REM[p_])
    def mask(i, skip):
        a.salu(f"s_mov_b64 exec, s[{SMASK+2*i}:{SMASK+2*i+1}]")
        a.salu(f"s_cbranch_execz {skip}")
    for p_ in range(4):
        for c_ in range(2):
            lab = f"M_LD_{p_}{c_}"
            mask((p_ * 2 + c_) * 2, lab)
            a.bload("buffer_load_dwordx4", REC + (p_ * 2 + c_) * 4, 4, ROF[p_], SRD_W, "0", 128 * c_)
            a.label(lab)
    a.salu("s_mov_b64 exec, -1")
    a.salu(f"s_cmp_eq_u32 s{S_ROUND}, 0")
    a.salu("s_cbranch_scc0 M_NOSETUP")
    for kk in range(5):
        a.salu(f"s_add_u32 s39, s{S_W}, {8 * kk}")
        if kk == 4:
            a.salu("s_cmp_ge_u32 s39, 34")
            a.salu("s_cbranch_scc1 M_WL_SKIP")
        if kk == 3:
            a.salu("s_lshl_b32 s38, s39, 10")
            a.m0(f"s_add_u32 m0, s38, {WUL - 24576}")
        else:
            a.salu(f"s_sub_u32 s38, s39, {8 if kk == 4 else 0}")
            a.salu("s_lshr_b32 s47, s38, 2")
            a.salu("s_lshl_b32 s47, s47, 13")
            a.salu("s_and_b32 s38, s38, 3")
            a.salu("s_lshl_b32 s38, s38, 10")
            a.salu("s_add_u32 s38, s38, s47")
            a.m0("s_add_u32 m0, s38, 4096")
        a.salu("s_lshl_b32 s39, s39, 10")
        a.salu(f"s_add_u32 s39, s39, {WS_WT}")
        a.bload_lds(VW, SRD_W, "s39")
    a.label("M_WL_SKIP")
    xtile_dma(VR)
    srd(a, SRD_E, 6, E * 32)
    srd(a, SRD_O, 8, N * 128)
    a.valu("v_and_b32", VM, "31", LANE)
    a.valu("v_lshrrev_b32", VHH, "5", LANE)
    a.valu("v_xor_b32", T[2], LANE, VQ)
    a.valu("v_and_b32", T[2], "1", T[2])
    a.valu("v_lshlrev_b32", EHALF, "4", T[2])
    a.valu("v_lshlrev_b32", VTB, "5", VHH)
    a.valu("v_add_u32", VTB, str(TBL), VTB)
    a.salu(f"s_mov_b32 s{S_C128}, 128")
    a.salu(f"s_mov_b32 s{S_M32}, 0xffffffe0")
    a.salu("s_mov_b32 s62, 0xbfb8aa3b")
    a.salu("s_mov_b32 s63, 0xbfb8aa3b")
    a.salu("s_mov_b32 s64, 1.0")
    a.salu("s_mov_b32 s65, 1.0")
    a.salu(f"s_lshl_b32 s{S_ME}, s{S_W}, 11")
    a.salu(f"s_add_u32 s{S_ME}, s{S_ME}, {ESTG}")
    a.salu(f"s_mov_b32 s52, {SRC16}")
    a.salu(f"s_mov_b32 s53, {DLS}")
    a.salu(f"s_mov_b32 s54, {EOFF}")
    a.valu("v_and_b32", T[0], "3", VM)
    a.valu("v_lshrrev_b32", T[1], "4", VM)
    a.valu("v_and_b32", T[2], "4", VM)
    a.valu("v_lshl_add_u32", T[2], T[0], "3", T[2])
    a.valu("v_lshl_add_u32", T[2], T[1], "1", T[2])
    a.valu("v_bfe_u32", T[3], VM, "3", "1")
    a.valu("v_add_u32", T[2], T[2], T[3])
    a.valu("v_lshl_add_u32", T[0], T[1], "2", T[0])
    a.valu("v_xor_b32", T[0], T[0], VHH)
    a.valu("v_lshlrev_b32", T[0], "4", T[0])
    a.valu("v_lshl_add_u32", T[0], T[2], "7", T[0])
    a.valu("v_add_u32", VA[0], f"s{S_MX}", T[0])
    for ks in range(1, 4):
        a.valu("v_xor_b32", VA[ks], str(32 * ks), VA[0])
    a.valu("v_xor_b32", T[0], T[3], VHH)
    a.valu("v_lshlrev_b32", T[0], "4", T[0])
    a.valu("v_lshl_add_u32", T[0], VM, "5", T[0])
    a.valu("v_add_u32", VE, f"s{S_ME}", T[0])
    a.valu("v_lshrrev_b32", T[0], "4", TID)
    a.valu("v_and_b32", T[1], "6", TID)
    a.valu("v_lshlrev_b32", T[1], "2", T[1])
    a.valu("v_bfe_u32", T[2], TID, "3", "1")
    a.valu("v_lshl_add_u32", T[1], T[2], "2", T[1])
    a.valu("v_and_b32", T[2], "1", TID)
    a.valu("v_lshl_add_u32", T[1], T[2], "1", T[1])
    a.valu("v_mov_b32", T[3], "0x3f80")
    a.valu("v_mov_b32", T[4], "0x3f800000")
    a.valu("v_cmp_eq_u32", "vcc", T[0], T[1])
    a.valu("v_cndmask_b32", T[3], "0", T[3], "vcc")
    a.valu("v_add_u32", T[1], "1", T[1])
    a.valu("v_cmp_eq_u32", "vcc", T[0], T[1])
    a.valu("v_cndmask_b32", T[4], "0", T[4], "vcc")
    a.valu("v_or_b32", T[3], T[3], T[4])
    a.valu("v_cmp_eq_u32", "vcc", "31", T[0])
    a.valu("v_mov_b32", T[4], "0")
    a.valu("v_cndmask_b32", T[3], T[3], T[4], "vcc")
    a.valu("v_lshlrev_b32", T[5], "2", TID)
    a.valu("v_add_u32", T[6], str(TBL), T[5])
    a.ds_write("ds_write_b32", T[6], T[3])
    a.valu("v_add_u32", T[5], str(CNT), T[5])
    a.valu("v_cmp_gt_u32", "vcc", str(NZERO), TID)
    a.salu("s_and_saveexec_b64 s[42:43], vcc")
    a.ds_write("ds_write_b32", T[5], T[4])
    a.salu("s_mov_b64 exec, s[42:43]")
    a.label("M_NOSETUP")
    a.valu("v_mov_b32", T[6], "1")
    a.salu(f"s_mov_b32 s38, {CNT}")
    a.salu(f"s_mov_b32 s47, {4 * TC}")
    a.valu("v_and_b32", T[5], "15", TID)
    a.valu("v_lshl_add_u32", T[5], T[5], "2", "s38")
    a.salu(f"s_cmp_eq_u32 s{S_ROUND}, 0")
    a.salu("s_cbranch_scc1 M_RW8")
    a.wait(vm=0)
    a.label("M_RW8")
    a.wait(vm=8, lgkm=0)
    a.barrier()
    stamp(2)
    for i, p_, K in recs():
        lab = f"M_AT_{i}"
        mask(i, lab)
        a.valu("v_bfe_u32", T[0], REC + 2 * i, "16", "3")
        a.valu("v_lshl_add_u32", BS + i, T[0], "6", T[5])
        a.ds_add_rtn(RANK + i, BS + i, T[6])
        a.label(lab)
    a.salu("s_mov_b64 exec, s[40:41]")
    a.salu("s_cbranch_execz M_AT_DONE")
    a.valu("v_mov_b32", T[0], str(FLAG))
    a.ds_write("ds_write_b32", T[0], T[6])
    a.label("M_AT_DONE")
    a.salu("s_mov_b64 exec, -1")
    a.wait(vm=0, lgkm=0)
    a.barrier()
    WA = {(ks, c): 112 + (ks * 2 + c) * 4 for ks in range(4) for c in range(2)}
    XT = [144, 148, 152, 156]
    a.salu(f"s_cmp_eq_u32 s{S_ROUND}, 0")
    a.salu("s_cbranch_scc0 M_NOWR")
    a.valu("v_and_b32", T[0], "63", TID)
    a.valu("v_lshlrev_b32", T[0], "4", T[0])
    def slot(k):
        return (k >> 2) * 8192 + 4096 + (k & 3) * 1024
    for dst, mb in ((WA, 0), (WB, 8), (WV, 16)):
        for ks in range(4):
            for c in range(2):
                a.ds_read("ds_read_b128", dst[(ks, c)], 4, T[0], off=slot(mb + ks * 2 + c))
    for c in range(2):
        a.ds_read("ds_read_b128", WC[c], 4, T[0], off=slot(24 + c))
    for ks in range(4):
        a.ds_read("ds_read_b128", XT[ks], 4, VA[ks])
    a.label("M_NOWR")
    a.valu("v_and_b32", T[0], "63", TID)
    a.valu("v_lshl_add_u32", T[0], T[0], "2", "s38")
    a.ds_read("ds_read_b32", T[1], 1, T[0])
    a.ds_read("ds_read_b32", T[2], 1, T[0], off=256)
    a.valu("v_mov_b32", T[5], str(FLAG))
    a.ds_read("ds_read_b32", T[5], 1, T[5])
    a.valu("v_bfe_u32", T[6], TID, "4", "2")
    a.valu("v_mul_u32_u24", T[6], str(TC), T[6])
    a.wait(lgkm=0)
    a.valu("v_readfirstlane_b32", f"s{S_MORE}", T[5], flags={'readlane': 1})
    a.valu("v_mov_b32", T[3], T[1])
    a.valu("v_mov_b32", T[4], T[2])
    for sh in (1, 2, 4, 8):
        a.valu("v_add_u32_dpp", T[3], T[3], T[3], mods=f"row_shr:{sh} row_mask:0xf bank_mask:0xf bound_ctrl:0", flags={'dpp': 1})
        a.valu("v_add_u32_dpp", T[4], T[4], T[4], mods=f"row_shr:{sh} row_mask:0xf bank_mask:0xf bound_ctrl:0", flags={'dpp': 1})
    a.valu("v_max_u32", T[5], T[3], T[4])
    a.valu("v_cmp_lt_u32", "vcc", str(TC - 32), T[5])
    a.salu("s_cbranch_vccnz M_OVERFLOW")
    a.valu("v_sub_u32", T[1], T[3], T[1])
    a.valu("v_sub_u32", T[2], T[4], T[2])
    a.valu("v_add_u32", T[1], T[1], T[6])
    a.valu("v_add3_u32", T[2], T[2], T[6], "s47")
    a.ds_write("ds_write_b32", T[0], T[1], off=BASE - CNT)
    a.ds_write("ds_write_b32", T[0], T[2], off=BASE - CNT + 256)
    a.salu(f"s_and_b32 s55, s{S_W}, 3")
    a.salu("s_lshl_b32 s55, s55, 4")
    a.salu("s_add_u32 s55, s55, 15")
    a.valu("v_readlane_b32", "s51", T[3], "s55", flags={'readlane': 1})
    a.valu("v_readlane_b32", "s56", T[4], "s55", flags={'readlane': 1})
    a.salu(f"s_cmp_ge_u32 s{S_W}, 4")
    a.salu("s_cselect_b32 s51, s56, s51")
    a.salu("s_add_u32 s50, s51, 31")
    a.salu("s_and_b32 s50, s50, 0xffffffe0")
    a.salu(f"s_mul_i32 s49, s{S_W}, {TC}")
    a.wait(lgkm=0)
    for i, p_, K in recs():
        lab = f"M_BS_{i}"
        mask(i, lab)
        a.ds_read("ds_read_b32", BS + i, 1, BS + i, off=BASE - CNT)
        a.label(lab)
    a.salu("s_mov_b64 exec, -1")

    def place(pos, w0, w1, dl):
        a.valu("v_lshl_add_u32", T[4], pos, "1", "s52")
        a.ds_write("ds_write_b16", T[4], w0)
        a.valu("v_lshl_add_u32", T[6], pos, "2", "s54")
        a.ds_write("ds_write_b32", T[6], w1)

    a.valu("v_and_b32", T[3], "63", TID)
    a.salu("s_sub_u32 s55, s50, s51")
    a.salu("s_add_u32 s56, s49, s51")
    a.valu("v_cmp_gt_u32", "vcc", "s55", T[3])
    a.valu("v_add_u32", T[3], "s56", T[3])
    a.valu("v_mov_b32", T[0], "0")
    a.valu("v_mov_b32", T[1], "31")
    a.salu("s_mov_b64 exec, vcc")
    place(T[3], T[0], T[1], T[1])
    a.salu("s_mov_b64 exec, -1")
    a.wait(lgkm=0)
    for i, p_, K in recs():
        lab = f"M_PL_{i}"
        mask(i, lab)
        a.valu("v_add_u32", T[3], BS + i, RANK + i)
        place(T[3], REC + 2 * i, REC + 2 * i + 1, T[5])
        a.label(lab)
    a.salu("s_mov_b64 exec, -1")
    a.salu(f"s_lshr_b32 s{S_N}, s50, 5")
    a.salu(f"s_mov_b32 s{S_I}, 0")
    a.valu("v_and_b32", T[1], "63", TID)
    a.salu("s_lshl_b32 s55, s49, 1")
    a.salu("s_add_u32 s56, s55, s52")
    a.valu("v_lshrrev_b32", T[0], "3", T[1])
    a.valu("v_lshl_add_u32", VSRC, T[0], "3", "s56")
    a.salu("s_lshl_b32 s56, s49, 2")
    a.salu("s_add_u32 s56, s56, s54")
    def pi_of(dst, p):
        a.valu("v_and_b32", dst, "3", p)
        a.valu("v_lshrrev_b32", T[5], "1", p)
        a.valu("v_and_or_b32", dst, T[5], "12", dst)
        a.valu("v_lshlrev_b32", T[5], "2", p)
        a.valu("v_and_or_b32", dst, T[5], "16", dst)
    a.valu("v_lshrrev_b32", T[0], "1", T[1])
    pi_of(T[2], T[0])
    a.valu("v_lshl_add_u32", VEO, T[2], "2", "s56")
    a.valu("v_and_b32", T[0], "31", T[1])
    pi_of(T[2], T[0])
    a.valu("v_lshl_add_u32", VEM, T[2], "2", "s56")
    a.wait(lgkm=0)
    a.barrier()
    stamp(3)
    a.ds_read("ds_read_b64", PS, 2, VSRC)
    a.ds_read("ds_read_b32", PE, 1, VEO)
    a.ds_read("ds_read_b64", SD, 2, VSRC, off=64)
    a.ds_read("ds_read_b32", SD + 2, 1, VEO, off=128)
    a.ds_read("ds_read_b32", DM, 1, VEM)
    a.valu("v_and_b32", T[0], "31", TID)
    a.valu("v_lshl_add_u32", T[0], T[0], "6", VTB)
    a.ds_read("ds_read_b128", IDB[0], 4, T[0])
    a.ds_read("ds_read_b128", IDB[1], 4, T[0], off=16)
    a.wait(lgkm=0)
    a.salu(f"s_cmp_eq_u32 s{S_N}, 0")
    a.salu("s_cbranch_scc1 M_PRE_DONE")
    dma_issue(a, PS, PE)
    a.salu(f"s_cmp_eq_u32 s{S_N}, 1")
    a.salu("s_cbranch_scc1 M_PRE_DONE")
    a.salu(f"s_xor_b32 s{S_MX}, s{S_MX}, 4096")
    a.salu(f"s_xor_b32 s{S_ME}, s{S_ME}, 1024")
    dma_issue(a, SD, SD + 2)
    a.salu(f"s_xor_b32 s{S_MX}, s{S_MX}, 4096")
    a.salu(f"s_xor_b32 s{S_ME}, s{S_ME}, 1024")
    a.label("M_PRE_DONE")
    a.valu("v_add_u32", VSRC, "128", VSRC)
    a.valu("v_add_u32", VEO, "256", VEO)
    a.valu("v_add_u32", VEM, "128", VEM)
    a.salu(f"s_and_b32 s38, s{S_ROUND}, 0x7fffffff")
    a.salu("s_cmp_eq_u32 s38, 0")
    a.salu("s_cbranch_scc0 M_NOAT")
    for c, o in ((0, GG), (1, HH)):
        for ks in range(4):
            a.mfma32(o, XT[ks], WA[(ks, c)], None if ks == 0 else o)
    for c, o in ((0, GG), (1, HH)):
        for s in range(2):
            for k in range(4):
                a.valu("v_cvt_pk_bf16_f32", AT[(s, c)] + k, o + 8 * s + 2 * k, o + 8 * s + 2 * k + 1)
    for r in range(104, 168):
        a.valu("v_mov_b32", r, "0")
    a.label("M_NOAT")
    a.salu(f"s_lshl_b32 s57, s{S_W}, 2")
    a.salu(f"s_add_u32 s57, s57, {PROG}")
    a.valu("v_mov_b32", VPROG, "s57")
    a.fence()
    a.salu(f"s_cmp_ge_u32 s{S_I}, s{S_N}")
    a.salu("s_cbranch_scc1 M_LOOP_END")

    def operand_reads(tag):
        a.salu(f"s_add_u32 s39, s38, 1")
        a.salu(f"s_cmp_lt_u32 s39, s{S_N}")
        a.salu(f"s_cbranch_scc1 M_W5{tag}")
        a.wait(vm=0)
        a.salu(f"s_branch M_W0{tag}")
        a.label(f"M_W5{tag}")
        a.wait(vm=5)
        a.label(f"M_W0{tag}")
        a.valu("v_and_b32", T[0], "31", DM)
        a.valu("v_lshl_add_u32", TOH, T[0], "6", VTB)
        a.ds_read("ds_read_b128", OH[0], 4, TOH)
        a.ds_read("ds_read_b128", OH[1], 4, TOH, off=16)
        for ks in range(4):
            a.ds_read("ds_read_b128", X[ks], 4, VA[ks])
        a.ds_read("ds_read_b128", EOP, 4, VE)
        a.ds_read("ds_read_b64", PS, 2, VSRC)
        a.ds_read("ds_read_b32", PE, 1, VEO)
        a.ds_read("ds_read_b32", DM, 1, VEM)
        if BAL:
            a.salu(f"s_sub_u32 s57, s{S_N}, s38")
            a.valu("v_mov_b32", T[1], "s57")
            a.valu("v_xor_b32", T[2], "16", VPROG)
            a.ds_write("ds_write_b32", VPROG, T[1])
            a.ds_read("ds_read_b32", T[5], 1, T[2])
        for ks in range(4):
            a.valu("v_xor_b32", VA[ks], "0x1000", VA[ks])
        a.valu("v_xor_b32", VE, "0x400", VE)
        a.valu("v_add_u32", VSRC, "64", VSRC)
        a.valu("v_add_u32", VEO, "0x80", VEO)
        a.valu("v_add_u32", VEM, "0x80", VEM)

    a.salu(f"s_mov_b32 s38, s{S_I}")
    operand_reads("P")

    a.label("M_GROUP")
    a.wait(lgkm=0)
    if BAL:
        a.valu("v_readfirstlane_b32", "s58", T[5], flags={'readlane': 1})
        a.salu("s_cmp_ge_u32 s57, s58")
        a.salu("s_cbranch_scc1 M_PHI")
        a.salu("s_setprio 0")
        a.salu("s_branch M_PDONE")
        a.label("M_PHI")
        a.salu("s_setprio 1")
        a.label("M_PDONE")
    if not NOCOMP:
        a.mfma32(HH, OH[0], IDB[0], None)
        a.mfma32(HH, OH[1], IDB[1], HH)
    a.salu(f"s_add_u32 s38, s{S_I}, 2")
    a.salu(f"s_cmp_lt_u32 s38, s{S_N}")
    a.salu("s_cbranch_scc0 M_NODMA")
    dma_issue(a, PS, PE)
    a.label("M_NODMA")
    a.salu(f"s_xor_b32 s{S_MX}, s{S_MX}, 4096")
    a.salu(f"s_xor_b32 s{S_ME}, s{S_ME}, 1024")

    for c in range(2):
        if not NOCOMP:
            for ks in range(4):
                a.mfma32(GG, X[ks], WB[(ks, c)], None if ks == 0 else GG)
            a.mfma32(GG, EOP, WC[c], GG)
            a.mfma32(GG, OH[0], AT[(0, c)], GG)
            a.mfma32(GG, OH[1], AT[(1, c)], GG)
            if c == 0:
                for k in range(8):
                    a.valu("v_cvt_pk_bf16_f32", SD + k, HH + 2 * k, HH + 2 * k + 1)
            for ks in range(4):
                a.mfma32(HH, X[ks], WV[(ks, c)], None if ks == 0 else HH)
        if c == 1:
            a.salu(f"s_add_u32 s38, s{S_I}, 1")
            a.salu(f"s_cmp_lt_u32 s38, s{S_N}")
            a.salu("s_cbranch_scc0 M_NOPF")
            operand_reads("L")
            a.label("M_NOPF")
            a.nop(6)
        if NOCOMP:
            continue
        if PK:
            for k in range(8):
                a.valu("v_pk_mul_f32", GG + 2 * k, (GG + 2 * k, 2), "s[62:63]", dn=2)
        else:
            for k in range(16):
                a.valu("v_mul_f32", GG + k, "s62", GG + k)
        for k in range(16):
            a.valu("v_exp_f32", GG + k, GG + k, trans=True)
        if PK:
            for k in range(8):
                a.valu("v_pk_add_f32", GG + 2 * k, (GG + 2 * k, 2), "s[64:65]", dn=2)
        else:
            for k in range(16):
                a.valu("v_add_f32", GG + k, "1.0", GG + k)
        for k in range(16):
            a.valu("v_rcp_f32", GG + k, GG + k, trans=True)
        if PK:
            for k in range(8):
                a.valu("v_pk_mul_f32", HH + 2 * k, (GG + 2 * k, 2), (HH + 2 * k, 2), dn=2)
        else:
            for k in range(16):
                a.valu("v_mul_f32", HH + k, GG + k, HH + k)
        for k in range(8):
            a.valu("v_cvt_pk_bf16_f32", GG + k, GG + 2 * k, GG + 2 * k + 1)
        for k in range(8):
            a.valu("v_cvt_pk_bf16_f32", HH + k, HH + 2 * k, HH + 2 * k + 1)
        a.mfma32(DEN[c], SD, GG, DEN[c])
        a.mfma32(DEN[c], SD + 4, GG + 4, DEN[c])
        a.mfma32(NUM[c], SD, HH, NUM[c])
        a.mfma32(NUM[c], SD + 4, HH + 4, NUM[c])
    a.salu(f"s_add_u32 s{S_I}, s{S_I}, 1")
    a.salu(f"s_cmp_lt_u32 s{S_I}, s{S_N}")
    a.salu("s_cbranch_scc1 M_GROUP")

    a.label("M_LOOP_END")
    a.fence()
    if BAL:
        a.valu("v_mov_b32", T[1], "0")
        a.ds_write("ds_write_b32", VPROG, T[1])
        a.salu("s_setprio 0")
    stamp(4)
    a.salu(f"s_cmp_eq_u32 s{S_MORE}, 0")
    a.salu("s_cbranch_scc1 M_EPI")
    a.wait(vm=0, lgkm=0)
    a.barrier()
    a.valu("v_mov_b32", T[4], "0")
    a.valu("v_lshlrev_b32", T[5], "2", TID)
    a.valu("v_add_u32", T[5], str(CNT), T[5])
    a.valu("v_cmp_gt_u32", "vcc", str(NZERO), TID)
    a.salu("s_and_saveexec_b64 s[40:41], vcc")
    a.ds_write("ds_write_b32", T[5], T[4])
    a.salu("s_mov_b64 exec, s[40:41]")
    a.salu(f"s_add_u32 s{S_ROUND}, s{S_ROUND}, 1")
    a.salu(f"s_add_u32 s{S_DONE}, s{S_DONE}, s{S_STEP}")
    a.salu(f"s_and_b32 s38, s{S_N}, 1")
    a.salu("s_cmp_eq_u32 s38, 0")
    a.salu("s_cbranch_scc1 M_PAR_OK")
    for ks in range(4):
        a.valu("v_xor_b32", VA[ks], "0x1000", VA[ks])
    a.valu("v_xor_b32", VE, "0x400", VE)
    a.salu(f"s_xor_b32 s{S_MX}, s{S_MX}, 4096")
    a.salu(f"s_xor_b32 s{S_ME}, s{S_ME}, 1024")
    a.label("M_PAR_OK")
    a.wait(lgkm=0)
    a.fence()
    a.salu("s_branch M_ROUND")

    a.label("M_OVERFLOW")
    a.wait(vm=0, lgkm=0)
    a.barrier()
    a.valu("v_mov_b32", T[4], "0")
    a.valu("v_lshlrev_b32", T[5], "2", TID)
    a.valu("v_add_u32", T[5], str(CNT), T[5])
    a.valu("v_cmp_gt_u32", "vcc", str(NZERO), TID)
    a.salu("s_and_saveexec_b64 s[40:41], vcc")
    a.ds_write("ds_write_b32", T[5], T[4])
    a.salu("s_mov_b64 exec, s[40:41]")
    a.salu(f"s_mov_b32 s{S_STEP}, 4")
    a.salu(f"s_cmp_eq_u32 s{S_ROUND}, 0")
    a.salu("s_cbranch_scc0 M_OV2")
    a.salu(f"s_mov_b32 s{S_ROUND}, 0x80000000")
    a.label("M_OV2")
    a.wait(lgkm=0)
    a.fence()
    a.salu("s_branch M_ROUND")
    a.label("M_EPI")
    WU = {(ks, c): 40 + (ks * 2 + c) * 4 for ks in range(4) for c in range(2)}
    XE = [72, 76, 80, 84]
    XR = [88, 92, 96, 100]
    a.valu("v_bfe_u32", T[6], TID, "3", "3")
    xtile_dma(T[6])
    LANE2, VM2, VHH2 = T[0], T[1], T[2]
    a.valu("v_and_b32", LANE2, "63", TID)
    a.valu("v_and_b32", VM2, "31", LANE2)
    a.valu("v_lshrrev_b32", VHH2, "5", LANE2)
    a.valu("v_lshlrev_b32", T[3], "4", LANE2)
    a.valu("v_add_u32", T[4], str(WUL), T[3])
    for ks in range(4):
        for c in range(2):
            a.ds_read("ds_read_b128", WU[(ks, c)], 4, T[4], off=(ks * 2 + c) * 1024)
    for i in range(4):
        a.bload("buffer_load_dwordx4", XR[i], 4, T[3], SRD_X, "s46", i * 1024)
    for c in range(2):
        for r in range(16):
            a.valu("v_add_f32", DEN[c] + r, "0x358637bd", DEN[c] + r)
    for c in range(2):
        for r in range(16):
            a.valu("v_rcp_f32", DEN[c] + r, DEN[c] + r, trans=True)
    for c in range(2):
        for k in range(8):
            a.valu("v_pk_mul_f32", NUM[c] + 2 * k, (NUM[c] + 2 * k, 2), (DEN[c] + 2 * k, 2), dn=2)
    a.wait(vm=4)
    for ks in range(4):
        a.ds_read("ds_read_b128", XE[ks], 4, VA[ks])
    a.wait(lgkm=0)
    for c in range(2):
        for ks in range(4):
            a.mfma32(NUM[c], XE[ks], WU[(ks, c)], NUM[c])
    a.salu(f"s_lshl_b32 s38, s{S_W}, 13")
    a.valu("v_lshlrev_b32", T[4], "10", VHH2)
    a.valu("v_lshl_add_u32", T[4], VM2, "2", T[4])
    a.valu("v_add_u32", T[4], "s38", T[4])
    a.valu("v_lshlrev_b32", T[5], "5", LANE2)
    a.valu("v_add_u32", T[5], "s38", T[5])
    for c in range(2):
        for r in range(16):
            if (r >> 2) == 3 and (r & 3) >= 1:
                continue
            a.valu("v_max_f32", NUM[c] + r, "0", NUM[c] + r)
            a.ds_write("ds_write_b32", T[4], NUM[c] + r, off=(8 * (r >> 2) + (r & 3)) * 256 + c * 128)
    a.wait(lgkm=0)
    ZR = [104, 112, 120, 128]
    for i in range(4):
        a.ds_read("ds_read_b128", ZR[i], 4, T[5], off=i * 2048)
        a.ds_read("ds_read_b128", ZR[i] + 4, 4, T[5], off=i * 2048 + 16)
    a.valu("v_mov_b32", T[6], "0x40000000")
    a.valu("v_cmp_gt_u32", "vcc", "8", LANE2)
    a.valu("v_cndmask_b32", T[6], T[6], T[3], "vcc")
    a.wait(vm=0, lgkm=0)
    for i in range(4):
        for k in range(4):
            a.valu("v_lshlrev_b32", T[0], "16", XR[i] + k)
            a.valu("v_and_b32", T[1], "0xffff0000", XR[i] + k)
            a.valu("v_add_f32", T[0], T[0], ZR[i] + 2 * k)
            a.valu("v_add_f32", T[1], T[1], ZR[i] + 2 * k + 1)
            a.valu("v_cvt_pk_bf16_f32", XR[i] + k, T[0], T[1])
        a.bstore("buffer_store_dwordx4", XR[i], 4, T[3] if i < 3 else T[6], SRD_O, "s46", i * 1024)
    if INSTR:
        stamp(5)
        a.salu(f"s_cmp_lg_u32 s2, {INSTR}")
        a.salu("s_cbranch_scc1 M_END")
        a.salu("s_load_dwordx2 s[64:65], s[0:1], 80")
        a.wait(lgkm=0)
        srd(a, 64, 64, 256)
        a.salu(f"s_lshl_b32 s70, s{S_W}, 5")
        a.valu("v_mov_b32", T[0], "0")
        for k, sreg in enumerate((44, 45, 100, 101, 60, 61)):
            a.salu(f"s_sub_u32 s71, s{sreg}, s44")
            if k == 0:
                a.salu(f"s_mov_b32 s71, s{S_N}")
            a.valu("v_mov_b32", T[1], "s71")
            a.bstore("buffer_store_dword", T[1], 1, T[0], 64, "s70", 4 * k)
    a.label("M_END")
    a.salu("s_endpgm")
    return a.text()


def kd(name, vg, sg):
    return f""".amdhsa_kernel {name}
  .amdhsa_next_free_vgpr {vg}
  .amdhsa_next_free_sgpr {sg}
  .amdhsa_accum_offset {(vg + 3) // 4 * 4}
  .amdhsa_group_segment_fixed_size 0
  .amdhsa_kernarg_size 96
  .amdhsa_user_sgpr_count 2
  .amdhsa_user_sgpr_kernarg_segment_ptr 1
  .amdhsa_system_sgpr_workgroup_id_x 1
.end_amdhsa_kernel
"""

def main():
    out = HEADER.format(mainlds=MAINLDS)
    out += gen_part()
    out += gen_main()
    out += '.section .rodata,"a"\n.p2align 6\n'
    out += kd("gp_part_kernel", 64, 64)
    out += ".p2align 6\n"
    out += kd("gp_main_kernel", 256, 102)
    path = sys.argv[1] if len(sys.argv) > 1 else "gather_scatter__edge_featured_mpnn_gatedgcn__graph.s"
    open(path, "w").write(out)
    print("wrote", path, len(out), "bytes; main lds", MAINLDS)

if __name__ == "__main__":
    main()
```

```python
import sys, os
sys.path.insert(0, os.path.dirname(__file__))
from asmlib import Asm, vr, sr, R

N = 50000; E = 800000
G = 250; CH = 3200; NB = 250; NPB = 200
WS_REC = 0
WS_TAB = 6400000
WS_WT = 6660096
WS_SIZE = 8 << 20
INSTR = int(os.environ.get("INSTR", "0"))
NOCOMP = int(os.environ.get("NOCOMP", "0"))
NOMEM = int(os.environ.get("NOMEM", "0"))
PRIO = int(os.environ.get("PRIO", "1"))
ENT = int(os.environ.get("ENT", "0"))
BAL = int(os.environ.get("BAL", "1"))
PK = int(os.environ.get("PK", "0"))
K1ST = os.environ.get("K1ST", "")
K1DIRECT = int(os.environ.get("K1DIRECT", "0"))

HEADER = """; Kernarg layout for this problem (96 bytes, ptrs only, base s[0:1]):
; @launch kernel=gp_part_kernel grid=(255,1,1) block=(640,1,1) lds=27648
; @launch kernel=gp_main_kernel grid=(256,1,1) block=(512,1,1) lds={mainlds}
.amdgcn_target "amdgcn-amd-amdhsa--gfx950"
.text
"""

def srd(a, d, base, nbytes):
    a.salu(f"s_mov_b32 s{d}, s{base}")
    a.salu(f"s_and_b32 s{d+1}, s{base+1}, 0xffff")
    a.salu(f"s_mov_b32 s{d+2}, {nbytes}")
    a.salu(f"s_mov_b32 s{d+3}, 0x00020000")


def gen_part():
    a = Asm()
    a.raw(".globl gp_part_kernel\n.p2align 8\n.type gp_part_kernel,@function\ngp_part_kernel:")
    a.salu("s_cmp_gt_u32 s2, 254")
    a.salu("s_cbranch_scc1 P_END")
    a.salu("s_load_dwordx4 s[4:7], s[0:1], 16")
    a.salu("s_load_dwordx2 s[8:9], s[0:1], 88")
    a.salu("s_cmp_ge_u32 s2, 250")
    a.salu("s_cbranch_scc1 P_WEIGHTS")
    a.valu("v_lshlrev_b32", 1, "2", 0)
    a.valu("v_mov_b32", 2, "0")
    a.valu("v_mov_b32", 4, "1")
    a.valu("v_cmp_gt_u32", "vcc", "256", 0)
    a.salu("s_and_saveexec_b64 s[30:31], vcc")
    a.ds_write("ds_write_b32", 1, 2)
    a.salu("s_mov_b64 exec, s[30:31]")
    a.wait(lgkm=0)
    srd(a, 12, 4, E * 4)
    srd(a, 16, 6, E * 4)
    srd(a, 20, 8, WS_SIZE)
    a.salu("s_mul_i32 s3, s2, 12800")
    a.valu("v_add_u32", 3, "s3", 1)
    a.salu("s_mov_b32 s40, 5120")
    a.salu("s_mov_b32 s41, 10240")
    locs = [("0", 0), ("0", 2560), ("s40", 0), ("s40", 2560), ("s41", 0)]
    for k in range(5):
        a.bload("buffer_load_dword", 10 + k, 1, 3, 16, locs[k][0], locs[k][1])
    for k in range(5):
        a.bload("buffer_load_dword", 15 + k, 1, 3, 12, locs[k][0], locs[k][1])
    a.salu("s_mov_b32 s42, 21474837")
    a.valu("v_lshlrev_b32", 9, "3", 3)
    a.barrier()
    a.wait(vm=5)
    for k in range(5):
        d = 10 + k
        a.valu("v_mul_hi_u32", 5, d, "s42")
        a.valu("v_mul_u32_u24", 6, "200", 5)
        a.valu("v_sub_u32", 6, d, 6)
        a.valu("v_lshlrev_b32", 20 + k, "2", 5)
        a.ds_add_rtn(25 + k, 20 + k, 4)
        a.valu("v_mul_u32_u24", 7, "41", 6)
        a.valu("v_lshrrev_b32", 7, "10", 7)
        a.valu("v_mul_u32_u24", 8, "25", 7)
        a.valu("v_sub_u32", 8, 6, 8)
        a.valu("v_lshlrev_b32", 10 + k, "16", 7)
        a.valu("v_add3_u32", 31 + 2 * k, 9, 8, "s%d" % (44 + k)) if False else None
        a.valu("v_add_u32", 31 + 2 * k, str(k * 20480), 9)
        a.valu("v_or_b32", 31 + 2 * k, 31 + 2 * k, 8)
    a.wait(vm=0)
    for k in range(5):
        a.valu("v_or_b32", 30 + 2 * k, 10 + k, 15 + k)
    a.wait(lgkm=0)
    a.barrier()
    a.valu("v_cmp_gt_u32", "vcc", "64", 0)
    a.salu("s_and_saveexec_b64 s[30:31], vcc")
    a.salu("s_cbranch_execz P_SCAN_DONE")
    a.valu("v_lshlrev_b32", 40, "4", 0)
    a.ds_read("ds_read_b128", 44, 4, 40)
    a.wait(lgkm=0)
    a.valu("v_add_u32", 48, 44, 45)
    a.valu("v_add_u32", 49, 48, 46)
    a.valu("v_add_u32", 50, 49, 47)
    a.valu("v_mov_b32", 51, 50)
    for sh in (1, 2, 4, 8):
        a.valu("v_add_u32_dpp", 51, 51, 51, mods=f"row_shr:{sh} row_mask:0xf bank_mask:0xf bound_ctrl:0", flags={'dpp': 1})
    a.valu("v_add_u32_dpp", 51, 51, 51, mods="row_bcast:15 row_mask:0xa bank_mask:0xf", flags={'dpp': 1})
    a.valu("v_add_u32_dpp", 51, 51, 51, mods="row_bcast:31 row_mask:0xc bank_mask:0xf", flags={'dpp': 1})
    a.valu("v_sub_u32", 52, 51, 50)
    a.valu("v_add_u32", 53, 52, 44)
    a.valu("v_add_u32", 54, 52, 48)
    a.valu("v_add_u32", 55, 52, 49)
    a.ds_write("ds_write_b128", 40, 52, 4, off=1024)
    a.salu("s_lshl_b32 s43, s2, 2")
    a.salu(f"s_add_u32 s43, s43, {WS_TAB}")
    a.valu("v_lshlrev_b32", 41, "12", 0)
    a.valu("v_cmp_gt_u32", "vcc", "63", 0)
    a.salu("s_and_b64 exec, exec, vcc")
    for j in range(3):
        a.bstore("buffer_store_dword", 52 + j, 1, 41, 20, "s43", j * 1024)
    a.valu("v_cmp_gt_u32", "vcc", "62", 0)
    a.salu("s_and_b64 exec, exec, vcc")
    a.bstore("buffer_store_dword", 55, 1, 41, 20, "s43", 3072)
    a.wait(lgkm=0)
    a.label("P_SCAN_DONE")
    a.salu("s_mov_b64 exec, s[30:31]")
    a.barrier()
    for k in range(5):
        a.ds_read("ds_read_b32", 44 + k, 1, 20 + k, off=1024)
    a.wait(lgkm=0)
    if K1DIRECT:
        a.salu("s_mul_i32 s44, s2, 25600")
        for k in range(5):
            a.valu("v_add_u32", 5 + k, 44 + k, 25 + k)
            a.valu("v_lshlrev_b32", 5 + k, "3", 5 + k)
            a.bstore("buffer_store_dwordx2", 30 + 2 * k, 2, 5 + k, 20, "s44")
        a.salu("s_endpgm")
    for k in range(5):
        a.valu("v_add_u32", 5, 44 + k, 25 + k)
        a.valu("v_lshlrev_b32", 5, "3", 5)
        a.ds_write("ds_write_b64", 5, 30 + 2 * k, 2, off=2048)
    a.wait(lgkm=0)
    a.barrier()
    a.valu("v_lshlrev_b32", 5, "4", 0)
    a.salu("s_mul_i32 s44, s2, 25600")
    a.ds_read("ds_read_b128", 44, 4, 5, off=2048)
    a.ds_read("ds_read_b128", 48, 4, 5, off=2048 + 10240)
    a.valu("v_cmp_gt_u32", "vcc", "320", 0)
    a.salu("s_and_saveexec_b64 s[30:31], vcc")
    a.ds_read("ds_read_b128", 52, 4, 5, off=2048 + 20480)
    a.salu("s_mov_b64 exec, s[30:31]")
    a.salu("s_add_u32 s45, s44, 10240")
    a.salu("s_add_u32 s46, s44, 20480")
    a.wait(lgkm=2)
    a.bstore("buffer_store_dwordx4", 44, 4, 5, 20, "s44", extra=K1ST)
    a.wait(lgkm=1)
    a.bstore("buffer_store_dwordx4", 48, 4, 5, 20, "s45", extra=K1ST)
    a.wait(lgkm=0)
    a.salu("s_and_saveexec_b64 s[30:31], vcc")
    a.bstore("buffer_store_dwordx4", 52, 4, 5, 20, "s46", extra=K1ST)
    a.salu("s_endpgm")

    a.label("P_WEIGHTS")
    a.salu("s_sub_u32 s3, s2, 250")
    a.salu("s_lshl_b32 s40, s3, 13")
    a.salu(f"s_add_u32 s40, s40, {WS_WT}")
    a.salu("s_mov_b32 s41, 32")
    a.salu("s_cmp_eq_u32 s3, 1")
    a.salu("s_cselect_b32 s41, 40, s41")
    a.salu("s_cmp_eq_u32 s3, 2")
    a.salu("s_cselect_b32 s41, 64, s41")
    a.salu("s_cmp_eq_u32 s3, 3")
    a.salu("s_cselect_b32 s41, 56, s41")
    a.salu("s_cmp_eq_u32 s3, 4")
    a.salu("s_cselect_b32 s41, 48, s41")
    a.salu("s_movk_i32 s42, 0x2000")
    a.salu("s_cselect_b32 s42, 2048, s42")
    a.salu("s_load_dwordx2 s[12:13], s[0:1], s41")
    a.wait(lgkm=0)
    srd(a, 20, 8, WS_SIZE)
    srd(a, 28, 12, 0)
    a.salu("s_mov_b32 s30, s42")
    for j in range(7):
        a.valu("v_add_u32", 1, str(640 * j), 0)
        a.valu("v_lshlrev_b32", 2, "1", 1)
        a.bload("buffer_load_ushort", 10 + j, 1, 2, 28)
        a.valu("v_lshrrev_b32", 3, "10", 1)
        a.valu("v_bfe_u32", 4, 1, "5", "1")
        a.valu("v_lshl_add_u32", 3, 3, "1", 4)
        a.valu("v_bfe_u32", 4, 1, "9", "1")
        a.valu("v_lshl_add_u32", 3, 3, "1", 4)
        a.valu("v_and_b32", 4, "31", 1)
        a.valu("v_lshl_add_u32", 3, 3, "5", 4)
        a.valu("v_bfe_u32", 4, 1, "6", "3")
        a.valu("v_lshl_add_u32", 3, 3, "3", 4)
        a.valu("v_lshlrev_b32", 3, "1", 3)
        a.valu("v_mov_b32", 5, "0x40000000")
        a.valu("v_cmp_gt_u32", "vcc", "s42", 2)
        a.valu("v_cndmask_b32", 20 + j, 5, 3, "vcc")
    a.wait(vm=0)
    for j in range(7):
        a.bstore("buffer_store_short", 10 + j, 1, 20 + j, 20, "s40")
    a.label("P_END")
    a.salu("s_endpgm")
    return a.text()


CAP = 250 * 32 + 256
XSTG = 0
ESTG = 65536
SRC16 = 81920
DLS = SRC16 + CAP * 2
EOFF = DLS + CAP * 2
CNT = EOFF + CAP * 4
TC = CAP // 8
BASE = CNT + 512
PROG = CNT + 1024
FLAG = CNT + 1088
TBL = CNT + 1152
NZERO = 288
WUL = TBL + 2048
MAINLDS = WUL + 8192
WVL = DLS
WTMP = SRC16

TID = 0
T = list(range(2, 9))
VTB = 9
IDB = [10, 100]
SWZ = [14, 15, 1, 31]
EHALF = 16
VA = [17, 18, 19, 20]
VE, VPROG, VEM, VSRC, VEO = 21, 22, 23, 24, 25
PS, PE, DM, TOH = 26, 28, 29, 30
SD = 32
X = [40, 44, 48, 52]
EOP = 56
OH = [60, 64]
GG, HH = 68, 84
DEN = [104, 120]
NUM = [136, 152]
WB = {(ks, c): 168 + (ks * 2 + c) * 4 for ks in range(4) for c in range(2)}
GB = 200
WVB = [216, 220, 224, 228]
WC = [232, 236]
AT = {(s, c): 240 + (s * 2 + c) * 4 for s in range(2) for c in range(2)}
SRD_X, SRD_E, SRD_O, SRD_W = 12, 16, 20, 24
S_W, S_ROUND, S_MORE, S_C128 = 28, 29, 30, 31
S_I, S_N = 32, 33
S_MX, S_ME = 36, 37
S_M32 = 59
S_DONE, S_STEP = 34, 35
SMASK = 66


def dma_issue(a, ps, pe):
    a.valu("v_mad_u32_u16", T[0], ps, f"s{S_C128}", SWZ[0])
    a.valu("v_mad_u32_u16", T[1], ps, f"s{S_C128}", SWZ[1], mods="op_sel:[1,0,0,0]")
    a.valu("v_mad_u32_u16", T[2], ps + 1, f"s{S_C128}", SWZ[2])
    a.valu("v_mad_u32_u16", T[3], ps + 1, f"s{S_C128}", SWZ[3], mods="op_sel:[1,0,0,0]")
    a.valu("v_and_or_b32", T[4], pe, f"s{S_M32}", EHALF)
    if NOMEM:
        for j in range(5):
            a.valu("v_and_b32", T[j], "0x3ff", T[j])
    for j in range(4):
        if j == 0:
            a.m0(f"s_mov_b32 m0, s{S_MX}")
        else:
            a.m0(f"s_add_u32 m0, s{S_MX}, {1024*j}")
        a.bload_lds(T[j], SRD_X)
    a.m0(f"s_mov_b32 m0, s{S_ME}")
    a.bload_lds(T[4], SRD_E, extra=" nt" if ENT else "")


def gen_main():
    a = Asm()
    def stamp(k):
        if INSTR:
            a.salu("s_memtime s[98:99]")
            a.wait(lgkm=0)
            a.salu(f"s_mov_b32 s{(44, 45, 100, 101, 60, 61)[k]}, s98")
    a.raw(".globl gp_main_kernel\n.p2align 8\n.type gp_main_kernel,@function\ngp_main_kernel:")
    a.salu("s_cmp_ge_u32 s2, 256")
    a.salu("s_cbranch_scc1 M_END")
    a.salu("s_and_b32 s3, s2, 7")
    a.salu("s_lshl_b32 s3, s3, 5")
    a.salu("s_lshr_b32 s2, s2, 3")
    a.salu("s_add_u32 s2, s2, s3")
    a.salu("s_cmp_ge_u32 s2, 250")
    a.salu("s_cbranch_scc1 M_END")
    a.salu("s_load_dwordx2 s[10:11], s[0:1], 88")
    a.salu("s_load_dwordx4 s[4:7], s[0:1], 0")
    a.salu("s_load_dwordx2 s[8:9], s[0:1], 72")
    stamp(0)
    LANE, VQ, VM, VHH, VW, VR = 160, 161, 162, 163, 164, 165
    a.valu("v_and_b32", LANE, "63", TID)
    a.valu("v_lshrrev_b32", T[0], "6", TID)
    a.valu("v_readfirstlane_b32", f"s{S_W}", T[0], flags={'readlane': 1})
    a.valu("v_lshlrev_b32", VW, "4", LANE)
    a.valu("v_lshrrev_b32", VQ, "4", LANE)
    a.valu("v_lshrrev_b32", VR, "3", LANE)
    a.salu(f"s_mov_b32 s{S_ROUND}, 0")
    a.salu(f"s_mov_b32 s{S_DONE}, 0")
    a.salu(f"s_mov_b32 s{S_STEP}, 32")
    a.salu(f"s_lshl_b32 s{S_MX}, s{S_W}, 13")
    a.salu("s_mul_i32 s42, s2, 200")
    a.salu(f"s_mul_i32 s43, s{S_W}, 25")
    a.salu("s_add_u32 s42, s42, s43")
    a.salu("s_lshl_b32 s46, s42, 7")
    a.valu("v_and_b32", T[2], "7", LANE)
    a.valu("v_and_b32", T[3], "1", VQ)
    a.valu("v_lshlrev_b32", T[3], "2", T[3])
    a.valu("v_xor_b32", T[3], T[2], T[3])
    a.valu("v_lshlrev_b32", SWZ[0], "4", T[3])
    for j in range(1, 4):
        a.valu("v_xor_b32", SWZ[j], str(16 * j), SWZ[0])
    a.wait(lgkm=0)
    srd(a, SRD_W, 10, WS_SIZE)
    srd(a, SRD_X, 4, N * 128)

    def xtile_dma(vr_):
        a.valu("v_and_b32", T[0], "2", vr_)
        a.valu("v_lshlrev_b32", T[0], "3", T[0])
        a.valu("v_and_b32", T[1], "1", vr_)
        a.valu("v_lshl_add_u32", T[0], T[1], "3", T[0])
        a.valu("v_lshrrev_b32", T[1], "2", vr_)
        a.valu("v_lshl_add_u32", T[0], T[1], "2", T[0])
        a.valu("v_lshlrev_b32", T[0], "7", T[0])
        for j in range(4):
            a.valu("v_add_u32", T[1 + j], T[0], SWZ[j])
        for j in range(4):
            a.salu(f"s_add_u32 s38, s46, {128 * j}")
            if j == 0:
                a.m0(f"s_mov_b32 m0, s{S_MX}")
            else:
                a.m0(f"s_add_u32 m0, s{S_MX}, {1024*j}")
            a.bload_lds(T[1 + j], SRD_X, "s38")

    REC = 40; RANK = 72; BS = 88
    REM = [32, 33, 34, 35]; ROF = [36, 37, 38, 39]
    a.label("M_ROUND")
    a.valu("v_lshrrev_b32", T[0], "3", TID)
    a.valu("v_lshlrev_b32", T[1], "2", T[0])
    a.salu("s_lshl_b32 s38, s2, 10")
    a.salu(f"s_add_u32 s38, s38, {WS_TAB}")
    for p_ in range(4):
        a.bload("buffer_load_dword", ROF[p_], 1, T[1], SRD_W, "s38", 256 * p_)
        a.bload("buffer_load_dword", REM[p_], 1, T[1], SRD_W, "s38", 1024 + 256 * p_)
    a.valu("v_lshrrev_b32", T[0], "3", TID)
    a.valu("v_and_b32", T[2], "7", TID)
    a.valu("v_lshlrev_b32", T[2], "1", T[2])
    a.valu("v_add_u32", T[6], f"s{S_DONE}", T[2])
    a.wait(vm=0)
    stamp(1)
    for p_ in range(4):
        a.valu("v_sub_u32", REM[p_], REM[p_], ROF[p_])
        if p_ == 3:
            a.valu("v_cmp_gt_u32", "vcc", str(250 - 192), T[0])
            a.valu("v_cndmask_b32", REM[p_], "0", REM[p_], "vcc")
        a.valu("v_subrev_u32", REM[p_], f"s{S_DONE}", REM[p_])
        if p_ == 0:
            a.valu("v_mov_b32", T[5], REM[p_])
        else:
            a.valu("v_max_i32", T[5], T[5], REM[p_])
        a.valu("v_min_i32", REM[p_], f"s{S_STEP}", REM[p_])
        a.valu("v_sub_u32", REM[p_], REM[p_], T[2])
        a.valu("v_add_u32", T[3], str(64 * p_), T[0])
        a.valu("v_mul_u32_u24", T[3], "3200", T[3])
        a.valu("v_add3_u32", T[3], T[3], ROF[p_], T[6])
        a.valu("v_lshlrev_b32", ROF[p_], "3", T[3])
    a.valu("v_cmp_lt_i32", "s[40:41]", f"s{S_STEP}", T[5])
    def recs():
        for p_ in range(4):
            for c_ in range(2):
                for h_ in range(2):
                    yield (p_ * 2 + c_) * 2 + h_, p_, 16 * c_ + h_
    for i, p_, K in recs():
        a.valu("v_cmp_lt_i32", f"s[{SMASK+2*i}:{SMASK+2*i+1}]", str(K), REM[p_])
    def mask(i, skip):
        a.salu(f"s_mov_b64 exec, s[{SMASK+2*i}:{SMASK+2*i+1}]")
        a.salu(f"s_cbranch_execz {skip}")
    for p_ in range(4):
        for c_ in range(2):
            lab = f"M_LD_{p_}{c_}"
            mask((p_ * 2 + c_) * 2, lab)
            a.bload("buffer_load_dwordx4", REC + (p_ * 2 + c_) * 4, 4, ROF[p_], SRD_W, "0", 128 * c_)
            a.label(lab)
    a.salu("s_mov_b64 exec, -1")
    a.salu(f"s_cmp_eq_u32 s{S_ROUND}, 0")
    a.salu("s_cbranch_scc0 M_NOSETUP")
    for kk in range(5):
        a.salu(f"s_add_u32 s39, s{S_W}, {8 * kk}")
        if kk == 4:
            a.salu("s_cmp_ge_u32 s39, 34")
            a.salu("s_cbranch_scc1 M_WL_SKIP")
        if kk == 3:
            a.salu("s_lshl_b32 s38, s39, 10")
            a.m0(f"s_add_u32 m0, s38, {WUL - 24576}")
        elif kk == 2:
            a.salu("s_lshl_b32 s38, s39, 10")
            a.m0(f"s_add_u32 m0, s38, {WVL - 16384}")
        else:
            a.salu(f"s_sub_u32 s38, s39, {8 if kk == 4 else 0}")
            a.salu("s_lshr_b32 s47, s38, 2")
            a.salu("s_lshl_b32 s47, s47, 13")
            a.salu("s_and_b32 s38, s38, 3")
            a.salu("s_lshl_b32 s38, s38, 10")
            a.salu("s_add_u32 s38, s38, s47")
            a.m0("s_add_u32 m0, s38, 4096")
        a.salu("s_lshl_b32 s39, s39, 10")
        a.salu(f"s_add_u32 s39, s39, {WS_WT}")
        a.bload_lds(VW, SRD_W, "s39")
    a.label("M_WL_SKIP")
    xtile_dma(VR)
    srd(a, SRD_E, 6, E * 32)
    srd(a, SRD_O, 8, N * 128)
    a.valu("v_and_b32", VM, "31", LANE)
    a.valu("v_lshrrev_b32", VHH, "5", LANE)
    a.valu("v_xor_b32", T[2], LANE, VQ)
    a.valu("v_and_b32", T[2], "1", T[2])
    a.valu("v_lshlrev_b32", EHALF, "4", T[2])
    a.valu("v_lshlrev_b32", VTB, "5", VHH)
    a.valu("v_add_u32", VTB, str(TBL), VTB)
    a.salu(f"s_mov_b32 s{S_C128}, 128")
    a.salu(f"s_mov_b32 s{S_M32}, 0xffffffe0")
    a.salu("s_mov_b32 s62, 0xbfb8aa3b")
    a.salu("s_mov_b32 s63, 0xbfb8aa3b")
    a.salu("s_mov_b32 s64, 1.0")
    a.salu("s_mov_b32 s65, 1.0")
    a.salu(f"s_lshl_b32 s{S_ME}, s{S_W}, 11")
    a.salu(f"s_add_u32 s{S_ME}, s{S_ME}, {ESTG}")
    a.salu(f"s_mov_b32 s52, {SRC16}")
    a.salu(f"s_mov_b32 s53, {DLS}")
    a.salu(f"s_mov_b32 s54, {EOFF}")
    a.valu("v_and_b32", T[0], "3", VM)
    a.valu("v_lshrrev_b32", T[1], "4", VM)
    a.valu("v_and_b32", T[2], "4", VM)
    a.valu("v_lshl_add_u32", T[2], T[0], "3", T[2])
    a.valu("v_lshl_add_u32", T[2], T[1], "1", T[2])
    a.valu("v_bfe_u32", T[3], VM, "3", "1")
    a.valu("v_add_u32", T[2], T[2], T[3])
    a.valu("v_lshl_add_u32", T[0], T[1], "2", T[0])
    a.valu("v_xor_b32", T[0], T[0], VHH)
    a.valu("v_lshlrev_b32", T[0], "4", T[0])
    a.valu("v_lshl_add_u32", T[0], T[2], "7", T[0])
    a.valu("v_add_u32", VA[0], f"s{S_MX}", T[0])
    for ks in range(1, 4):
        a.valu("v_xor_b32", VA[ks], str(32 * ks), VA[0])
    a.valu("v_xor_b32", T[0], T[3], VHH)
    a.valu("v_lshlrev_b32", T[0], "4", T[0])
    a.valu("v_lshl_add_u32", T[0], VM, "5", T[0])
    a.valu("v_add_u32", VE, f"s{S_ME}", T[0])
    a.valu("v_lshrrev_b32", T[0], "4", TID)
    a.valu("v_and_b32", T[1], "6", TID)
    a.valu("v_lshlrev_b32", T[1], "2", T[1])
    a.valu("v_bfe_u32", T[2], TID, "3", "1")
    a.valu("v_lshl_add_u32", T[1], T[2], "2", T[1])
    a.valu("v_and_b32", T[2], "1", TID)
    a.valu("v_lshl_add_u32", T[1], T[2], "1", T[1])
    a.valu("v_mov_b32", T[3], "0x3f80")
    a.valu("v_mov_b32", T[4], "0x3f800000")
    a.valu("v_cmp_eq_u32", "vcc", T[0], T[1])
    a.valu("v_cndmask_b32", T[3], "0", T[3], "vcc")
    a.valu("v_add_u32", T[1], "1", T[1])
    a.valu("v_cmp_eq_u32", "vcc", T[0], T[1])
    a.valu("v_cndmask_b32", T[4], "0", T[4], "vcc")
    a.valu("v_or_b32", T[3], T[3], T[4])
    a.valu("v_cmp_eq_u32", "vcc", "31", T[0])
    a.valu("v_mov_b32", T[4], "0")
    a.valu("v_cndmask_b32", T[3], T[3], T[4], "vcc")
    a.valu("v_lshlrev_b32", T[5], "2", TID)
    a.valu("v_add_u32", T[6], str(TBL), T[5])
    a.ds_write("ds_write_b32", T[6], T[3])
    a.valu("v_add_u32", T[5], str(CNT), T[5])
    a.valu("v_cmp_gt_u32", "vcc", str(NZERO), TID)
    a.salu("s_and_saveexec_b64 s[42:43], vcc")
    a.ds_write("ds_write_b32", T[5], T[4])
    a.salu("s_mov_b64 exec, s[42:43]")
    a.label("M_NOSETUP")
    a.valu("v_mov_b32", T[6], "1")
    a.salu(f"s_mov_b32 s38, {CNT}")
    a.salu(f"s_mov_b32 s47, {4 * TC}")
    a.valu("v_and_b32", T[5], "15", TID)
    a.valu("v_lshl_add_u32", T[5], T[5], "2", "s38")
    a.salu(f"s_cmp_eq_u32 s{S_ROUND}, 0")
    a.salu("s_cbranch_scc1 M_RW8")
    a.wait(vm=0)
    a.label("M_RW8")
    a.wait(vm=8, lgkm=0)
    a.barrier()
    stamp(2)
    for i, p_, K in recs():
        lab = f"M_AT_{i}"
        mask(i, lab)
        a.valu("v_bfe_u32", T[0], REC + 2 * i, "16", "3")
        a.valu("v_lshl_add_u32", BS + i, T[0], "6", T[5])
        a.ds_add_rtn(RANK + i, BS + i, T[6])
        a.label(lab)
    a.salu("s_mov_b64 exec, s[40:41]")
    a.salu("s_cbranch_execz M_AT_DONE")
    a.valu("v_mov_b32", T[0], str(FLAG))
    a.ds_write("ds_write_b32", T[0], T[6])
    a.label("M_AT_DONE")
    a.salu("s_mov_b64 exec, -1")
    a.wait(vm=0, lgkm=0)
    a.barrier()
    WA = {(ks, c): 112 + (ks * 2 + c) * 4 for ks in range(4) for c in range(2)}
    XT = [144, 148, 152, 156]
    a.salu(f"s_cmp_eq_u32 s{S_ROUND}, 0")
    a.salu("s_cbranch_scc0 M_NOWR")
    a.valu("v_and_b32", T[0], "63", TID)
    a.valu("v_lshlrev_b32", T[0], "4", T[0])
    def slot(k):
        return (k >> 2) * 8192 + 4096 + (k & 3) * 1024
    for dst, mb in ((WA, 0), (WB, 8)):
        for ks in range(4):
            for c in range(2):
                a.ds_read("ds_read_b128", dst[(ks, c)], 4, T[0], off=slot(mb + ks * 2 + c))
    for c in range(2):
        a.ds_read("ds_read_b128", WC[c], 4, T[0], off=slot(24 + c))
    for ks in range(4):
        a.ds_read("ds_read_b128", XT[ks], 4, VA[ks])
    a.label("M_NOWR")
    a.valu("v_and_b32", T[0], "63", TID)
    a.valu("v_lshl_add_u32", T[0], T[0], "2", "s38")
    a.ds_read("ds_read_b32", T[1], 1, T[0])
    a.ds_read("ds_read_b32", T[2], 1, T[0], off=256)
    a.valu("v_mov_b32", T[5], str(FLAG))
    a.ds_read("ds_read_b32", T[5], 1, T[5])
    a.valu("v_bfe_u32", T[6], TID, "4", "2")
    a.valu("v_mul_u32_u24", T[6], str(TC), T[6])
    a.wait(lgkm=0)
    a.valu("v_readfirstlane_b32", f"s{S_MORE}", T[5], flags={'readlane': 1})
    a.valu("v_mov_b32", T[3], T[1])
    a.valu("v_mov_b32", T[4], T[2])
    for sh in (1, 2, 4, 8):
        a.valu("v_add_u32_dpp", T[3], T[3], T[3], mods=f"row_shr:{sh} row_mask:0xf bank_mask:0xf bound_ctrl:0", flags={'dpp': 1})
        a.valu("v_add_u32_dpp", T[4], T[4], T[4], mods=f"row_shr:{sh} row_mask:0xf bank_mask:0xf bound_ctrl:0", flags={'dpp': 1})
    a.valu("v_max_u32", T[5], T[3], T[4])
    a.valu("v_cmp_lt_u32", "vcc", str(TC - 32), T[5])
    a.salu("s_cbranch_vccnz M_OVERFLOW")
    a.valu("v_sub_u32", T[1], T[3], T[1])
    a.valu("v_sub_u32", T[2], T[4], T[2])
    a.valu("v_add_u32", T[1], T[1], T[6])
    a.valu("v_add3_u32", T[2], T[2], T[6], "s47")
    a.ds_write("ds_write_b32", T[0], T[1], off=BASE - CNT)
    a.ds_write("ds_write_b32", T[0], T[2], off=BASE - CNT + 256)
    a.salu(f"s_and_b32 s55, s{S_W}, 3")
    a.salu("s_lshl_b32 s55, s55, 4")
    a.salu("s_add_u32 s55, s55, 15")
    a.valu("v_readlane_b32", "s51", T[3], "s55", flags={'readlane': 1})
    a.valu("v_readlane_b32", "s56", T[4], "s55", flags={'readlane': 1})
    a.salu(f"s_cmp_ge_u32 s{S_W}, 4")
    a.salu("s_cselect_b32 s51, s56, s51")
    a.salu("s_add_u32 s50, s51, 31")
    a.salu("s_and_b32 s50, s50, 0xffffffe0")
    a.salu(f"s_mul_i32 s49, s{S_W}, {TC}")
    a.wait(lgkm=0)
    for i, p_, K in recs():
        lab = f"M_BS_{i}"
        mask(i, lab)
        a.ds_read("ds_read_b32", BS + i, 1, BS + i, off=BASE - CNT)
        a.label(lab)
    a.salu("s_mov_b64 exec, -1")

    def place(pos, w0, w1, dl):
        a.valu("v_lshl_add_u32", T[4], pos, "1", "s52")
        a.ds_write("ds_write_b16", T[4], w0)
        a.valu("v_lshl_add_u32", T[6], pos, "2", "s54")
        a.ds_write("ds_write_b32", T[6], w1)

    a.valu("v_and_b32", T[3], "63", TID)
    a.salu("s_sub_u32 s55, s50, s51")
    a.salu("s_add_u32 s56, s49, s51")
    a.valu("v_cmp_gt_u32", "vcc", "s55", T[3])
    a.valu("v_add_u32", T[3], "s56", T[3])
    a.valu("v_mov_b32", T[0], "0")
    a.valu("v_mov_b32", T[1], "31")
    a.salu("s_mov_b64 exec, vcc")
    place(T[3], T[0], T[1], T[1])
    a.salu("s_mov_b64 exec, -1")
    a.wait(lgkm=0)
    for i, p_, K in recs():
        lab = f"M_PL_{i}"
        mask(i, lab)
        a.valu("v_add_u32", T[3], BS + i, RANK + i)
        place(T[3], REC + 2 * i, REC + 2 * i + 1, T[5])
        a.label(lab)
    a.salu("s_mov_b64 exec, -1")
    a.salu(f"s_lshr_b32 s{S_N}, s50, 5")
    a.salu(f"s_mov_b32 s{S_I}, 0")
    a.valu("v_and_b32", T[1], "63", TID)
    a.salu("s_lshl_b32 s55, s49, 1")
    a.salu("s_add_u32 s56, s55, s52")
    a.valu("v_lshrrev_b32", T[0], "3", T[1])
    a.valu("v_lshl_add_u32", VSRC, T[0], "3", "s56")
    a.salu("s_lshl_b32 s56, s49, 2")
    a.salu("s_add_u32 s56, s56, s54")
    def pi_of(dst, p):
        a.valu("v_and_b32", dst, "3", p)
        a.valu("v_lshrrev_b32", T[5], "1", p)
        a.valu("v_and_or_b32", dst, T[5], "12", dst)
        a.valu("v_lshlrev_b32", T[5], "2", p)
        a.valu("v_and_or_b32", dst, T[5], "16", dst)
    a.valu("v_lshrrev_b32", T[0], "1", T[1])
    pi_of(T[2], T[0])
    a.valu("v_lshl_add_u32", VEO, T[2], "2", "s56")
    a.valu("v_and_b32", T[0], "31", T[1])
    pi_of(T[2], T[0])
    a.valu("v_lshl_add_u32", VEM, T[2], "2", "s56")
    a.wait(lgkm=0)
    a.barrier()
    stamp(3)
    a.ds_read("ds_read_b64", PS, 2, VSRC)
    a.ds_read("ds_read_b32", PE, 1, VEO)
    a.ds_read("ds_read_b64", SD, 2, VSRC, off=64)
    a.ds_read("ds_read_b32", SD + 2, 1, VEO, off=128)
    a.ds_read("ds_read_b32", DM, 1, VEM)
    a.valu("v_and_b32", T[0], "31", TID)
    a.valu("v_lshl_add_u32", T[0], T[0], "6", VTB)
    a.ds_read("ds_read_b128", IDB[0], 4, T[0])
    a.ds_read("ds_read_b128", IDB[1], 4, T[0], off=16)
    a.wait(lgkm=0)
    a.salu(f"s_cmp_eq_u32 s{S_N}, 0")
    a.salu("s_cbranch_scc1 M_PRE_DONE")
    dma_issue(a, PS, PE)
    a.salu(f"s_cmp_eq_u32 s{S_N}, 1")
    a.salu("s_cbranch_scc1 M_PRE_DONE")
    a.salu(f"s_xor_b32 s{S_MX}, s{S_MX}, 4096")
    a.salu(f"s_xor_b32 s{S_ME}, s{S_ME}, 1024")
    dma_issue(a, SD, SD + 2)
    a.salu(f"s_xor_b32 s{S_MX}, s{S_MX}, 4096")
    a.salu(f"s_xor_b32 s{S_ME}, s{S_ME}, 1024")
    a.label("M_PRE_DONE")
    a.valu("v_add_u32", VSRC, "128", VSRC)
    a.valu("v_add_u32", VEO, "256", VEO)
    a.valu("v_add_u32", VEM, "128", VEM)
    a.salu(f"s_and_b32 s38, s{S_ROUND}, 0x7fffffff")
    a.salu("s_cmp_eq_u32 s38, 0")
    a.salu("s_cbranch_scc0 M_NOAT")
    for c, o in ((0, GG), (1, HH)):
        for ks in range(4):
            a.mfma32(o, XT[ks], WA[(ks, c)], None if ks == 0 else o)
    for c, o in ((0, GG), (1, HH)):
        for s in range(2):
            for k in range(4):
                a.valu("v_cvt_pk_bf16_f32", AT[(s, c)] + k, o + 8 * s + 2 * k, o + 8 * s + 2 * k + 1)
    for r in range(104, 168):
        a.valu("v_mov_b32", r, "0")
    a.label("M_NOAT")
    a.salu(f"s_lshl_b32 s57, s{S_W}, 2")
    a.salu(f"s_add_u32 s57, s57, {PROG}")
    a.valu("v_mov_b32", VPROG, "s57")
    a.fence()
    a.salu(f"s_cmp_ge_u32 s{S_I}, s{S_N}")
    a.salu("s_cbranch_scc1 M_LOOP_END")

    def operand_reads(tag):
        a.salu(f"s_add_u32 s39, s38, 1")
        a.salu(f"s_cmp_lt_u32 s39, s{S_N}")
        a.salu(f"s_cbranch_scc1 M_W5{tag}")
        a.wait(vm=0)
        a.salu(f"s_branch M_W0{tag}")
        a.label(f"M_W5{tag}")
        a.wait(vm=5)
        a.label(f"M_W0{tag}")
        a.valu("v_and_b32", T[0], "31", DM)
        a.valu("v_lshl_add_u32", TOH, T[0], "6", VTB)
        a.ds_read("ds_read_b128", OH[0], 4, TOH)
        a.ds_read("ds_read_b128", OH[1], 4, TOH, off=16)
        for ks in range(4):
            a.ds_read("ds_read_b128", X[ks], 4, VA[ks])
        a.ds_read("ds_read_b128", EOP, 4, VE)
        a.ds_read("ds_read_b64", PS, 2, VSRC)
        a.ds_read("ds_read_b32", PE, 1, VEO)
        a.ds_read("ds_read_b32", DM, 1, VEM)
        if BAL:
            a.salu(f"s_sub_u32 s57, s{S_N}, s38")
            a.valu("v_mov_b32", T[1], "s57")
            a.valu("v_xor_b32", T[2], "16", VPROG)
            a.ds_write("ds_write_b32", VPROG, T[1])
            a.ds_read("ds_read_b32", T[5], 1, T[2])
        for ks in range(4):
            a.valu("v_xor_b32", VA[ks], "0x1000", VA[ks])
        a.valu("v_xor_b32", VE, "0x400", VE)
        a.valu("v_add_u32", VSRC, "64", VSRC)
        a.valu("v_add_u32", VEO, "0x80", VEO)
        a.valu("v_add_u32", VEM, "0x80", VEM)

    VWV = TOH
    def wv_reads(c):
        a.valu("v_and_b32", T[6], "63", TID)
        a.valu("v_lshlrev_b32", T[6], "4", T[6])
        a.valu("v_add_u32", T[6], str(WVL), T[6])
        for ks in range(4):
            a.ds_read("ds_read_b128", WVB[ks], 4, T[6], off=(ks * 2 + c) * 1024)

    def g_mfmas(c):
        g = GG if c == 0 else GB
        l = [lambda ks=ks: a.mfma32(g, X[ks], WB[(ks, c)], None if ks == 0 else g) for ks in range(4)]
        l.append(lambda: a.mfma32(g, EOP, WC[c], g))
        l.append(lambda: a.mfma32(g, OH[0], AT[(0, c)], g))
        l.append(lambda: a.mfma32(g, OH[1], AT[(1, c)], g))
        return l
    def h_mfmas():
        return [lambda ks=ks: a.mfma32(HH, X[ks], WVB[ks], None if ks == 0 else HH) for ks in range(4)]
    def seg_mfmas(c):
        g = GG if c == 0 else GB
        return [lambda: a.mfma32(DEN[c], SD, g, DEN[c]), lambda: a.mfma32(DEN[c], SD + 4, g + 4, DEN[c]),
                lambda: a.mfma32(NUM[c], SD, HH, NUM[c]), lambda: a.mfma32(NUM[c], SD + 4, HH + 4, NUM[c])]
    def valu_ops(c):
        g = GG if c == 0 else GB
        v = []
        v += [lambda k=k: a.valu("v_mul_f32", g + k, "s62", g + k) for k in range(16)]
        v += [lambda k=k: a.valu("v_exp_f32", g + k, g + k, trans=True) for k in range(16)]
        v += [lambda k=k: a.valu("v_add_f32", g + k, "1.0", g + k) for k in range(16)]
        v += [lambda k=k: a.valu("v_rcp_f32", g + k, g + k, trans=True) for k in range(16)]
        v += [lambda k=k: a.valu("v_mul_f32", HH + k, g + k, HH + k) for k in range(16)]
        v += [lambda k=k: a.valu("v_cvt_pk_bf16_f32", g + k, g + 2 * k, g + 2 * k + 1) for k in range(8)]
        v += [lambda k=k: a.valu("v_cvt_pk_bf16_f32", HH + k, HH + 2 * k, HH + 2 * k + 1) for k in range(8)]
        return v
    def run_stage(v, events):
        for i in range(len(v) + 1):
            for e in events.get(i, []):
                e()
            if i < len(v):
                v[i]()

    a.salu(f"s_mov_b32 s38, s{S_I}")
    operand_reads("P")
    wv_reads(0)
    for k in range(8):
        a.valu("v_mov_b32", SD + k, "0")
        a.valu("v_mov_b32", GB + k, "0")
        a.valu("v_mov_b32", HH + k, "0")
    a.wait(lgkm=0)
    for m in g_mfmas(0):
        m()
    a.fence()

    a.label("M_GROUP")
    def prio():
        if BAL:
            a.valu("v_readfirstlane_b32", "s58", T[5], flags={'readlane': 1})
            a.salu("s_cmp_ge_u32 s57, s58")
            a.salu("s_cbranch_scc1 M_PHI")
            a.salu("s_setprio 0")
            a.salu("s_branch M_PDONE")
            a.label("M_PHI")
            a.salu("s_setprio 1")
            a.label("M_PDONE")
    def dma_block():
        a.salu(f"s_add_u32 s38, s{S_I}, 2")
        a.salu(f"s_cmp_lt_u32 s38, s{S_N}")
        a.salu("s_cbranch_scc0 M_NODMA")
        dma_issue(a, PS, PE)
        a.label("M_NODMA")
        a.salu(f"s_xor_b32 s{S_MX}, s{S_MX}, 4096")
        a.salu(f"s_xor_b32 s{S_ME}, s{S_ME}, 1024")
    def cvt_s():
        for k in range(8):
            a.valu("v_cvt_pk_bf16_f32", SD + k, HH + 2 * k, HH + 2 * k + 1)
    def next_ops():
        a.salu(f"s_add_u32 s38, s{S_I}, 1")
        a.salu(f"s_cmp_lt_u32 s38, s{S_N}")
        a.salu("s_cbranch_scc0 M_NOPF")
        operand_reads("L")
        a.label("M_NOPF")
    ev = {}
    def at(pos, f):
        ev.setdefault(pos, []).append(f)
    at(0, prio)
    sg = seg_mfmas(1)
    for k in range(4):
        at(4 * k, sg[k])
    at(16, lambda: a.mfma32(HH, OH[0], IDB[0], None))
    at(20, lambda: a.mfma32(HH, OH[1], IDB[1], HH))
    at(24, dma_block)
    at(36, cvt_s)
    hm = h_mfmas()
    for k in range(4):
        at(38 + 4 * k, hm[k])
    at(52, lambda: wv_reads(1))
    gm = g_mfmas(1)
    for k in range(7):
        at(54 + 5 * k, gm[k])
    run_stage(valu_ops(0), ev)
    ev = {}
    sg = seg_mfmas(0)
    for k in range(4):
        at(3 * k, sg[k])
    at(12, lambda: a.wait(lgkm=0))
    hm = h_mfmas()
    for k in range(4):
        at(12 + 4 * k, hm[k])
    at(26, next_ops)
    at(26, lambda: wv_reads(0))
    at(46, lambda: a.wait(lgkm=0))
    gm = g_mfmas(0)
    for k in range(7):
        at(46 + 5 * k, gm[k])
    run_stage(valu_ops(1), ev)
    a.salu(f"s_add_u32 s{S_I}, s{S_I}, 1")
    a.salu(f"s_cmp_lt_u32 s{S_I}, s{S_N}")
    a.salu("s_cbranch_scc1 M_GROUP")
    for m in seg_mfmas(1):
        m()

    a.label("M_LOOP_END")
    a.fence()
    if BAL:
        a.valu("v_mov_b32", T[1], "0")
        a.ds_write("ds_write_b32", VPROG, T[1])
        a.salu("s_setprio 0")
    stamp(4)
    a.salu(f"s_cmp_eq_u32 s{S_MORE}, 0")
    a.salu("s_cbranch_scc1 M_EPI")
    a.wait(vm=0, lgkm=0)
    a.barrier()
    a.valu("v_mov_b32", T[4], "0")
    a.valu("v_lshlrev_b32", T[5], "2", TID)
    a.valu("v_add_u32", T[5], str(CNT), T[5])
    a.valu("v_cmp_gt_u32", "vcc", str(NZERO), TID)
    a.salu("s_and_saveexec_b64 s[40:41], vcc")
    a.ds_write("ds_write_b32", T[5], T[4])
    a.salu("s_mov_b64 exec, s[40:41]")
    a.salu(f"s_add_u32 s{S_ROUND}, s{S_ROUND}, 1")
    a.salu(f"s_add_u32 s{S_DONE}, s{S_DONE}, s{S_STEP}")
    a.salu(f"s_and_b32 s38, s{S_N}, 1")
    a.salu("s_cmp_eq_u32 s38, 0")
    a.salu("s_cbranch_scc1 M_PAR_OK")
    for ks in range(4):
        a.valu("v_xor_b32", VA[ks], "0x1000", VA[ks])
    a.valu("v_xor_b32", VE, "0x400", VE)
    a.salu(f"s_xor_b32 s{S_MX}, s{S_MX}, 4096")
    a.salu(f"s_xor_b32 s{S_ME}, s{S_ME}, 1024")
    a.label("M_PAR_OK")
    a.wait(lgkm=0)
    a.fence()
    a.salu("s_branch M_ROUND")

    a.label("M_OVERFLOW")
    a.wait(vm=0, lgkm=0)
    a.barrier()
    a.valu("v_mov_b32", T[4], "0")
    a.valu("v_lshlrev_b32", T[5], "2", TID)
    a.valu("v_add_u32", T[5], str(CNT), T[5])
    a.valu("v_cmp_gt_u32", "vcc", str(NZERO), TID)
    a.salu("s_and_saveexec_b64 s[40:41], vcc")
    a.ds_write("ds_write_b32", T[5], T[4])
    a.salu("s_mov_b64 exec, s[40:41]")
    a.salu(f"s_mov_b32 s{S_STEP}, 4")
    a.salu(f"s_cmp_eq_u32 s{S_ROUND}, 0")
    a.salu("s_cbranch_scc0 M_OV2")
    a.salu(f"s_mov_b32 s{S_ROUND}, 0x80000000")
    a.label("M_OV2")
    a.wait(lgkm=0)
    a.fence()
    a.salu("s_branch M_ROUND")
    a.label("M_EPI")
    WU = {(ks, c): 40 + (ks * 2 + c) * 4 for ks in range(4) for c in range(2)}
    XE = [72, 76, 80, 84]
    XR = [88, 92, 96, 100]
    a.valu("v_bfe_u32", T[6], TID, "3", "3")
    xtile_dma(T[6])
    LANE2, VM2, VHH2 = T[0], T[1], T[2]
    a.valu("v_and_b32", LANE2, "63", TID)
    a.valu("v_and_b32", VM2, "31", LANE2)
    a.valu("v_lshrrev_b32", VHH2, "5", LANE2)
    a.valu("v_lshlrev_b32", T[3], "4", LANE2)
    a.valu("v_add_u32", T[4], str(WUL), T[3])
    for ks in range(4):
        for c in range(2):
            a.ds_read("ds_read_b128", WU[(ks, c)], 4, T[4], off=(ks * 2 + c) * 1024)
    for i in range(4):
        a.bload("buffer_load_dwordx4", XR[i], 4, T[3], SRD_X, "s46", i * 1024)
    for c in range(2):
        for r in range(16):
            a.valu("v_add_f32", DEN[c] + r, "0x358637bd", DEN[c] + r)
    for c in range(2):
        for r in range(16):
            a.valu("v_rcp_f32", DEN[c] + r, DEN[c] + r, trans=True)
    for c in range(2):
        for k in range(8):
            a.valu("v_pk_mul_f32", NUM[c] + 2 * k, (NUM[c] + 2 * k, 2), (DEN[c] + 2 * k, 2), dn=2)
    a.wait(vm=4)
    for ks in range(4):
        a.ds_read("ds_read_b128", XE[ks], 4, VA[ks])
    a.wait(lgkm=0)
    for c in range(2):
        for ks in range(4):
            a.mfma32(NUM[c], XE[ks], WU[(ks, c)], NUM[c])
    a.salu(f"s_lshl_b32 s38, s{S_W}, 13")
    a.valu("v_lshlrev_b32", T[4], "10", VHH2)
    a.valu("v_lshl_add_u32", T[4], VM2, "2", T[4])
    a.valu("v_add_u32", T[4], "s38", T[4])
    a.valu("v_lshlrev_b32", T[5], "5", LANE2)
    a.valu("v_add_u32", T[5], "s38", T[5])
    for c in range(2):
        for r in range(16):
            if (r >> 2) == 3 and (r & 3) >= 1:
                continue
            a.valu("v_max_f32", NUM[c] + r, "0", NUM[c] + r)
            a.ds_write("ds_write_b32", T[4], NUM[c] + r, off=(8 * (r >> 2) + (r & 3)) * 256 + c * 128)
    a.wait(lgkm=0)
    ZR = [104, 112, 120, 128]
    for i in range(4):
        a.ds_read("ds_read_b128", ZR[i], 4, T[5], off=i * 2048)
        a.ds_read("ds_read_b128", ZR[i] + 4, 4, T[5], off=i * 2048 + 16)
    a.valu("v_mov_b32", T[6], "0x40000000")
    a.valu("v_cmp_gt_u32", "vcc", "8", LANE2)
    a.valu("v_cndmask_b32", T[6], T[6], T[3], "vcc")
    a.wait(vm=0, lgkm=0)
    for i in range(4):
        for k in range(4):
            a.valu("v_lshlrev_b32", T[0], "16", XR[i] + k)
            a.valu("v_and_b32", T[1], "0xffff0000", XR[i] + k)
            a.valu("v_add_f32", T[0], T[0], ZR[i] + 2 * k)
            a.valu("v_add_f32", T[1], T[1], ZR[i] + 2 * k + 1)
            a.valu("v_cvt_pk_bf16_f32", XR[i] + k, T[0], T[1])
        a.bstore("buffer_store_dwordx4", XR[i], 4, T[3] if i < 3 else T[6], SRD_O, "s46", i * 1024)
    if INSTR:
        stamp(5)
        a.salu(f"s_cmp_lg_u32 s2, {INSTR}")
        a.salu("s_cbranch_scc1 M_END")
        a.salu("s_load_dwordx2 s[64:65], s[0:1], 80")
        a.wait(lgkm=0)
        srd(a, 64, 64, 256)
        a.salu(f"s_lshl_b32 s70, s{S_W}, 5")
        a.valu("v_mov_b32", T[0], "0")
        for k, sreg in enumerate((44, 45, 100, 101, 60, 61)):
            a.salu(f"s_sub_u32 s71, s{sreg}, s44")
            if k == 0:
                a.salu(f"s_mov_b32 s71, s{S_N}")
            a.valu("v_mov_b32", T[1], "s71")
            a.bstore("buffer_store_dword", T[1], 1, T[0], 64, "s70", 4 * k)
    a.label("M_END")
    a.salu("s_endpgm")
    return a.text()


def kd(name, vg, sg):
    return f""".amdhsa_kernel {name}
  .amdhsa_next_free_vgpr {vg}
  .amdhsa_next_free_sgpr {sg}
  .amdhsa_accum_offset {(vg + 3) // 4 * 4}
  .amdhsa_group_segment_fixed_size 0
  .amdhsa_kernarg_size 96
  .amdhsa_user_sgpr_count 2
  .amdhsa_user_sgpr_kernarg_segment_ptr 1
  .amdhsa_system_sgpr_workgroup_id_x 1
.end_amdhsa_kernel
"""

def main():
    out = HEADER.format(mainlds=MAINLDS)
    out += gen_part()
    out += gen_main()
    out += '.section .rodata,"a"\n.p2align 6\n'
    out += kd("gp_part_kernel", 64, 64)
    out += ".p2align 6\n"
    out += kd("gp_main_kernel", 256, 102)
    path = sys.argv[1] if len(sys.argv) > 1 else "gather_scatter__edge_featured_mpnn_gatedgcn__graph.s"
    open(path, "w").write(out)
    print("wrote", path, len(out), "bytes; main lds", MAINLDS)

if __name__ == "__main__":
    main()
```

```python
import sys, os
sys.path.insert(0, os.path.dirname(__file__))
from asmlib import Asm, vr, sr, R

N = 50000; E = 800000
G = 250; CH = 3200; NB = 250; NPB = 200
WS_REC = 0
WS_TAB = 6400000
WS_WT = 6660096
WS_SIZE = 8 << 20
INSTR = int(os.environ.get("INSTR", "0"))
NOCOMP = int(os.environ.get("NOCOMP", "0"))
NOMEM = int(os.environ.get("NOMEM", "0"))
PRIO = int(os.environ.get("PRIO", "1"))
ENT = int(os.environ.get("ENT", "0"))
BAL = int(os.environ.get("BAL", "1"))
PK = int(os.environ.get("PK", "0"))
K1ST = os.environ.get("K1ST", "")
K1DIRECT = int(os.environ.get("K1DIRECT", "0"))
PF = int(os.environ.get("PF", "0"))
FOLD = int(os.environ.get("FOLD", "1"))

HEADER = """; Kernarg layout for this problem (96 bytes, ptrs only, base s[0:1]):
; @launch kernel=gp_part_kernel grid=(255,1,1) block=(640,1,1) lds=27648
; @launch kernel=gp_main_kernel grid=(256,1,1) block=(512,1,1) lds={mainlds}
.amdgcn_target "amdgcn-amd-amdhsa--gfx950"
.text
"""

def srd(a, d, base, nbytes):
    a.salu(f"s_mov_b32 s{d}, s{base}")
    a.salu(f"s_and_b32 s{d+1}, s{base+1}, 0xffff")
    a.salu(f"s_mov_b32 s{d+2}, {nbytes}")
    a.salu(f"s_mov_b32 s{d+3}, 0x00020000")


def gen_part():
    a = Asm()
    a.raw(".globl gp_part_kernel\n.p2align 8\n.type gp_part_kernel,@function\ngp_part_kernel:")
    a.salu("s_cmp_gt_u32 s2, 254")
    a.salu("s_cbranch_scc1 P_PF" if PF else "s_cbranch_scc1 P_END")
    a.salu("s_load_dwordx4 s[4:7], s[0:1], 16")
    a.salu("s_load_dwordx2 s[8:9], s[0:1], 88")
    a.salu("s_cmp_ge_u32 s2, 250")
    a.salu("s_cbranch_scc1 P_WEIGHTS")
    a.valu("v_lshlrev_b32", 1, "2", 0)
    a.valu("v_mov_b32", 2, "0")
    a.valu("v_mov_b32", 4, "1")
    a.valu("v_cmp_gt_u32", "vcc", "256", 0)
    a.salu("s_and_saveexec_b64 s[30:31], vcc")
    a.ds_write("ds_write_b32", 1, 2)
    a.salu("s_mov_b64 exec, s[30:31]")
    a.wait(lgkm=0)
    srd(a, 12, 4, E * 4)
    srd(a, 16, 6, E * 4)
    srd(a, 20, 8, WS_SIZE)
    a.salu("s_mul_i32 s3, s2, 12800")
    a.valu("v_add_u32", 3, "s3", 1)
    a.salu("s_mov_b32 s40, 5120")
    a.salu("s_mov_b32 s41, 10240")
    locs = [("0", 0), ("0", 2560), ("s40", 0), ("s40", 2560), ("s41", 0)]
    for k in range(5):
        a.bload("buffer_load_dword", 10 + k, 1, 3, 16, locs[k][0], locs[k][1])
    for k in range(5):
        a.bload("buffer_load_dword", 15 + k, 1, 3, 12, locs[k][0], locs[k][1])
    a.salu("s_mov_b32 s42, 21474837")
    a.valu("v_lshlrev_b32", 9, "3", 3)
    a.barrier()
    a.wait(vm=5)
    for k in range(5):
        d = 10 + k
        a.valu("v_mul_hi_u32", 5, d, "s42")
        a.valu("v_mul_u32_u24", 6, "200", 5)
        a.valu("v_sub_u32", 6, d, 6)
        a.valu("v_lshlrev_b32", 20 + k, "2", 5)
        a.ds_add_rtn(25 + k, 20 + k, 4)
        a.valu("v_mul_u32_u24", 7, "41", 6)
        a.valu("v_lshrrev_b32", 7, "10", 7)
        a.valu("v_mul_u32_u24", 8, "25", 7)
        a.valu("v_sub_u32", 8, 6, 8)
        a.valu("v_lshlrev_b32", 10 + k, "16", 7)
        a.valu("v_add3_u32", 31 + 2 * k, 9, 8, "s%d" % (44 + k)) if False else None
        a.valu("v_add_u32", 31 + 2 * k, str(k * 20480), 9)
        a.valu("v_or_b32", 31 + 2 * k, 31 + 2 * k, 8)
    a.wait(vm=0)
    for k in range(5):
        a.valu("v_or_b32", 30 + 2 * k, 10 + k, 15 + k)
    a.wait(lgkm=0)
    a.barrier()
    a.valu("v_cmp_gt_u32", "vcc", "64", 0)
    a.salu("s_and_saveexec_b64 s[30:31], vcc")
    a.salu("s_cbranch_execz P_SCAN_DONE")
    a.valu("v_lshlrev_b32", 40, "4", 0)
    a.ds_read("ds_read_b128", 44, 4, 40)
    a.wait(lgkm=0)
    a.valu("v_add_u32", 48, 44, 45)
    a.valu("v_add_u32", 49, 48, 46)
    a.valu("v_add_u32", 50, 49, 47)
    a.valu("v_mov_b32", 51, 50)
    for sh in (1, 2, 4, 8):
        a.valu("v_add_u32_dpp", 51, 51, 51, mods=f"row_shr:{sh} row_mask:0xf bank_mask:0xf bound_ctrl:0", flags={'dpp': 1})
    a.valu("v_add_u32_dpp", 51, 51, 51, mods="row_bcast:15 row_mask:0xa bank_mask:0xf", flags={'dpp': 1})
    a.valu("v_add_u32_dpp", 51, 51, 51, mods="row_bcast:31 row_mask:0xc bank_mask:0xf", flags={'dpp': 1})
    a.valu("v_sub_u32", 52, 51, 50)
    a.valu("v_add_u32", 53, 52, 44)
    a.valu("v_add_u32", 54, 52, 48)
    a.valu("v_add_u32", 55, 52, 49)
    a.ds_write("ds_write_b128", 40, 52, 4, off=1024)
    a.salu("s_lshl_b32 s43, s2, 2")
    a.salu(f"s_add_u32 s43, s43, {WS_TAB}")
    a.valu("v_lshlrev_b32", 41, "12", 0)
    a.valu("v_cmp_gt_u32", "vcc", "63", 0)
    a.salu("s_and_b64 exec, exec, vcc")
    for j in range(3):
        a.bstore("buffer_store_dword", 52 + j, 1, 41, 20, "s43", j * 1024)
    a.valu("v_cmp_gt_u32", "vcc", "62", 0)
    a.salu("s_and_b64 exec, exec, vcc")
    a.bstore("buffer_store_dword", 55, 1, 41, 20, "s43", 3072)
    a.wait(lgkm=0)
    a.label("P_SCAN_DONE")
    a.salu("s_mov_b64 exec, s[30:31]")
    a.barrier()
    for k in range(5):
        a.ds_read("ds_read_b32", 44 + k, 1, 20 + k, off=1024)
    a.wait(lgkm=0)
    if K1DIRECT:
        a.salu("s_mul_i32 s44, s2, 25600")
        for k in range(5):
            a.valu("v_add_u32", 5 + k, 44 + k, 25 + k)
            a.valu("v_lshlrev_b32", 5 + k, "3", 5 + k)
            a.bstore("buffer_store_dwordx2", 30 + 2 * k, 2, 5 + k, 20, "s44")
        a.salu("s_endpgm")
    for k in range(5):
        a.valu("v_add_u32", 5, 44 + k, 25 + k)
        a.valu("v_lshlrev_b32", 5, "3", 5)
        a.ds_write("ds_write_b64", 5, 30 + 2 * k, 2, off=2048)
    a.wait(lgkm=0)
    a.barrier()
    a.valu("v_lshlrev_b32", 5, "4", 0)
    a.salu("s_mul_i32 s44, s2, 25600")
    a.ds_read("ds_read_b128", 44, 4, 5, off=2048)
    a.ds_read("ds_read_b128", 48, 4, 5, off=2048 + 10240)
    a.valu("v_cmp_gt_u32", "vcc", "320", 0)
    a.salu("s_and_saveexec_b64 s[30:31], vcc")
    a.ds_read("ds_read_b128", 52, 4, 5, off=2048 + 20480)
    a.salu("s_mov_b64 exec, s[30:31]")
    a.salu("s_add_u32 s45, s44, 10240")
    a.salu("s_add_u32 s46, s44, 20480")
    a.wait(lgkm=2)
    a.bstore("buffer_store_dwordx4", 44, 4, 5, 20, "s44", extra=K1ST)
    a.wait(lgkm=1)
    a.bstore("buffer_store_dwordx4", 48, 4, 5, 20, "s45", extra=K1ST)
    a.wait(lgkm=0)
    a.salu("s_and_saveexec_b64 s[30:31], vcc")
    a.bstore("buffer_store_dwordx4", 52, 4, 5, 20, "s46", extra=K1ST)
    a.salu("s_endpgm")

    a.label("P_WEIGHTS")
    a.salu("s_sub_u32 s3, s2, 250")
    a.salu("s_lshl_b32 s40, s3, 13")
    a.salu(f"s_add_u32 s40, s40, {WS_WT}")
    a.salu("s_mov_b32 s41, 32")
    a.salu("s_cmp_eq_u32 s3, 1")
    a.salu("s_cselect_b32 s41, 40, s41")
    a.salu("s_cmp_eq_u32 s3, 2")
    a.salu("s_cselect_b32 s41, 64, s41")
    a.salu("s_cmp_eq_u32 s3, 3")
    a.salu("s_cselect_b32 s41, 56, s41")
    a.salu("s_cmp_eq_u32 s3, 4")
    a.salu("s_cselect_b32 s41, 48, s41")
    a.salu("s_movk_i32 s42, 0x2000")
    a.salu("s_cselect_b32 s42, 2048, s42")
    a.salu("s_load_dwordx2 s[12:13], s[0:1], s41")
    a.wait(lgkm=0)
    srd(a, 20, 8, WS_SIZE)
    srd(a, 28, 12, 0)
    a.salu("s_mov_b32 s30, s42")
    for j in range(7):
        a.valu("v_add_u32", 1, str(640 * j), 0)
        a.valu("v_lshlrev_b32", 2, "1", 1)
        a.bload("buffer_load_ushort", 10 + j, 1, 2, 28)
        a.valu("v_lshrrev_b32", 3, "10", 1)
        a.valu("v_bfe_u32", 4, 1, "5", "1")
        a.valu("v_lshl_add_u32", 3, 3, "1", 4)
        a.valu("v_bfe_u32", 4, 1, "9", "1")
        a.valu("v_lshl_add_u32", 3, 3, "1", 4)
        a.valu("v_and_b32", 4, "31", 1)
        a.valu("v_lshl_add_u32", 3, 3, "5", 4)
        a.valu("v_bfe_u32", 4, 1, "6", "3")
        a.valu("v_lshl_add_u32", 3, 3, "3", 4)
        a.valu("v_lshlrev_b32", 3, "1", 3)
        a.valu("v_mov_b32", 5, "0x40000000")
        a.valu("v_cmp_gt_u32", "vcc", "s42", 2)
        a.valu("v_cndmask_b32", 20 + j, 5, 3, "vcc")
    a.wait(vm=0)
    if FOLD:
        a.salu("s_mov_b32 s44, 1.0")
        a.salu("s_cmp_eq_u32 s3, 1")
        a.salu("s_cselect_b32 s44, 0xbfb8aa3b, s44")
        a.salu("s_cmp_eq_u32 s3, 4")
        a.salu("s_cselect_b32 s44, 0xbfb8aa3b, s44")
        for j in range(7):
            a.valu("v_lshlrev_b32", 10 + j, "16", 10 + j)
            a.valu("v_mul_f32", 10 + j, "s44", 10 + j)
            a.valu("v_cvt_pk_bf16_f32", 10 + j, 10 + j, 10 + j)
    for j in range(7):
        a.bstore("buffer_store_short", 10 + j, 1, 20 + j, 20, "s40")
    a.label("P_END")
    a.salu("s_endpgm")
    if PF:
        a.label("P_PF")
        a.salu("s_sub_u32 s3, s2, 255")
        a.salu("s_cmp_ge_u32 s3, 250")
        a.salu("s_cbranch_scc1 P_END")
        a.salu("s_load_dwordx4 s[4:7], s[0:1], 0")
        a.wait(lgkm=0)
        srd(a, 12, 4, N * 128)
        srd(a, 16, 6, E * 32)
        a.valu("v_lshlrev_b32", 1, "4", 0)
        a.salu("s_mul_i32 s20, s3, 102400")
        for j in range(10):
            a.bload("buffer_load_dwordx4", 4 + 4 * j, 4, 1, 16, "s20")
            a.salu("s_add_u32 s20, s20, 10240")
        a.salu("s_mul_i32 s20, s3, 25600")
        for j in range(3):
            a.bload("buffer_load_dwordx4", 44 + 4 * j, 4, 1, 12, "s20")
            a.salu("s_add_u32 s20, s20, 10240")
        a.wait(vm=0)
        a.salu("s_endpgm")
    return a.text()


CAP = 250 * 32 + 256
XSTG = 0
ESTG = 65536
SRC16 = 81920
DLS = SRC16 + CAP * 2
EOFF = DLS + CAP * 2
CNT = EOFF + CAP * 4
TC = CAP // 8
BASE = CNT + 512
PROG = CNT + 1024
FLAG = CNT + 1088
TBL = CNT + 1152
NZERO = 288
WUL = TBL + 2048
MAINLDS = WUL + 8192
WVL = DLS
WTMP = SRC16

TID = 0
T = list(range(2, 9))
VTB = 9
IDB = [10, 100]
SWZ = [14, 15, 1, 31]
EHALF = 16
VA = [17, 18, 19, 20]
VE, VPROG, VEM, VSRC, VEO = 21, 22, 23, 24, 25
PS, PE, DM, TOH = 26, 28, 29, 30
SD = 32
X = [40, 44, 48, 52]
EOP = 56
OH = [60, 64]
GG, HH = 68, 84
DEN = [104, 120]
NUM = [136, 152]
WB = {(ks, c): 168 + (ks * 2 + c) * 4 for ks in range(4) for c in range(2)}
GB = 200
WVB = [216, 220, 224, 228]
WC = [232, 236]
AT = {(s, c): 240 + (s * 2 + c) * 4 for s in range(2) for c in range(2)}
SRD_X, SRD_E, SRD_O, SRD_W = 12, 16, 20, 24
S_W, S_ROUND, S_MORE, S_C128 = 28, 29, 30, 31
S_I, S_N = 32, 33
S_MX, S_ME = 36, 37
S_M32 = 59
S_DONE, S_STEP = 34, 35
SMASK = 66


def dma_issue(a, ps, pe):
    a.valu("v_mad_u32_u16", T[0], ps, f"s{S_C128}", SWZ[0])
    a.valu("v_mad_u32_u16", T[1], ps, f"s{S_C128}", SWZ[1], mods="op_sel:[1,0,0,0]")
    a.valu("v_mad_u32_u16", T[2], ps + 1, f"s{S_C128}", SWZ[2])
    a.valu("v_mad_u32_u16", T[3], ps + 1, f"s{S_C128}", SWZ[3], mods="op_sel:[1,0,0,0]")
    a.valu("v_and_or_b32", T[4], pe, f"s{S_M32}", EHALF)
    if NOMEM:
        for j in range(5):
            a.valu("v_and_b32", T[j], "0x3ff", T[j])
    for j in range(4):
        if j == 0:
            a.m0(f"s_mov_b32 m0, s{S_MX}")
        else:
            a.m0(f"s_add_u32 m0, s{S_MX}, {1024*j}")
        a.bload_lds(T[j], SRD_X)
    a.m0(f"s_mov_b32 m0, s{S_ME}")
    a.bload_lds(T[4], SRD_E, extra=" nt" if ENT else "")


def gen_main():
    a = Asm()
    def stamp(k):
        if INSTR:
            a.salu("s_memtime s[98:99]")
            a.wait(lgkm=0)
            a.salu(f"s_mov_b32 s{(44, 45, 100, 101, 60, 61)[k]}, s98")
    a.raw(".globl gp_main_kernel\n.p2align 8\n.type gp_main_kernel,@function\ngp_main_kernel:")
    a.salu("s_cmp_ge_u32 s2, 256")
    a.salu("s_cbranch_scc1 M_END")
    a.salu("s_and_b32 s3, s2, 7")
    a.salu("s_lshl_b32 s3, s3, 5")
    a.salu("s_lshr_b32 s2, s2, 3")
    a.salu("s_add_u32 s2, s2, s3")
    a.salu("s_cmp_ge_u32 s2, 250")
    a.salu("s_cbranch_scc1 M_END")
    a.salu("s_load_dwordx2 s[10:11], s[0:1], 88")
    a.salu("s_load_dwordx4 s[4:7], s[0:1], 0")
    a.salu("s_load_dwordx2 s[8:9], s[0:1], 72")
    stamp(0)
    LANE, VQ, VM, VHH, VW, VR = 160, 161, 162, 163, 164, 165
    a.valu("v_and_b32", LANE, "63", TID)
    a.valu("v_lshrrev_b32", T[0], "6", TID)
    a.valu("v_readfirstlane_b32", f"s{S_W}", T[0], flags={'readlane': 1})
    a.valu("v_lshlrev_b32", VW, "4", LANE)
    a.valu("v_lshrrev_b32", VQ, "4", LANE)
    a.valu("v_lshrrev_b32", VR, "3", LANE)
    a.salu(f"s_mov_b32 s{S_ROUND}, 0")
    a.salu(f"s_mov_b32 s{S_DONE}, 0")
    a.salu(f"s_mov_b32 s{S_STEP}, 32")
    a.salu(f"s_lshl_b32 s{S_MX}, s{S_W}, 13")
    a.salu("s_mul_i32 s42, s2, 200")
    a.salu(f"s_mul_i32 s43, s{S_W}, 25")
    a.salu("s_add_u32 s42, s42, s43")
    a.salu("s_lshl_b32 s46, s42, 7")
    a.valu("v_and_b32", T[2], "7", LANE)
    a.valu("v_and_b32", T[3], "1", VQ)
    a.valu("v_lshlrev_b32", T[3], "2", T[3])
    a.valu("v_xor_b32", T[3], T[2], T[3])
    a.valu("v_lshlrev_b32", SWZ[0], "4", T[3])
    for j in range(1, 4):
        a.valu("v_xor_b32", SWZ[j], str(16 * j), SWZ[0])
    a.wait(lgkm=0)
    srd(a, SRD_W, 10, WS_SIZE)
    srd(a, SRD_X, 4, N * 128)

    def xtile_dma(vr_):
        a.valu("v_and_b32", T[0], "2", vr_)
        a.valu("v_lshlrev_b32", T[0], "3", T[0])
        a.valu("v_and_b32", T[1], "1", vr_)
        a.valu("v_lshl_add_u32", T[0], T[1], "3", T[0])
        a.valu("v_lshrrev_b32", T[1], "2", vr_)
        a.valu("v_lshl_add_u32", T[0], T[1], "2", T[0])
        a.valu("v_lshlrev_b32", T[0], "7", T[0])
        for j in range(4):
            a.valu("v_add_u32", T[1 + j], T[0], SWZ[j])
        for j in range(4):
            a.salu(f"s_add_u32 s38, s46, {128 * j}")
            if j == 0:
                a.m0(f"s_mov_b32 m0, s{S_MX}")
            else:
                a.m0(f"s_add_u32 m0, s{S_MX}, {1024*j}")
            a.bload_lds(T[1 + j], SRD_X, "s38")

    REC = 40; RANK = 72; BS = 88
    REM = [32, 33, 34, 35]; ROF = [36, 37, 38, 39]
    a.label("M_ROUND")
    a.valu("v_lshrrev_b32", T[0], "3", TID)
    a.valu("v_lshlrev_b32", T[1], "2", T[0])
    a.salu("s_lshl_b32 s38, s2, 10")
    a.salu(f"s_add_u32 s38, s38, {WS_TAB}")
    for p_ in range(4):
        a.bload("buffer_load_dword", ROF[p_], 1, T[1], SRD_W, "s38", 256 * p_)
        a.bload("buffer_load_dword", REM[p_], 1, T[1], SRD_W, "s38", 1024 + 256 * p_)
    a.valu("v_lshrrev_b32", T[0], "3", TID)
    a.valu("v_and_b32", T[2], "7", TID)
    a.valu("v_lshlrev_b32", T[2], "1", T[2])
    a.valu("v_add_u32", T[6], f"s{S_DONE}", T[2])
    a.wait(vm=0)
    stamp(1)
    for p_ in range(4):
        a.valu("v_sub_u32", REM[p_], REM[p_], ROF[p_])
        if p_ == 3:
            a.valu("v_cmp_gt_u32", "vcc", str(250 - 192), T[0])
            a.valu("v_cndmask_b32", REM[p_], "0", REM[p_], "vcc")
        a.valu("v_subrev_u32", REM[p_], f"s{S_DONE}", REM[p_])
        if p_ == 0:
            a.valu("v_mov_b32", T[5], REM[p_])
        else:
            a.valu("v_max_i32", T[5], T[5], REM[p_])
        a.valu("v_min_i32", REM[p_], f"s{S_STEP}", REM[p_])
        a.valu("v_sub_u32", REM[p_], REM[p_], T[2])
        a.valu("v_add_u32", T[3], str(64 * p_), T[0])
        a.valu("v_mul_u32_u24", T[3], "3200", T[3])
        a.valu("v_add3_u32", T[3], T[3], ROF[p_], T[6])
        a.valu("v_lshlrev_b32", ROF[p_], "3", T[3])
    a.valu("v_cmp_lt_i32", "s[40:41]", f"s{S_STEP}", T[5])
    def recs():
        for p_ in range(4):
            for c_ in range(2):
                for h_ in range(2):
                    yield (p_ * 2 + c_) * 2 + h_, p_, 16 * c_ + h_
    for i, p_, K in recs():
        a.valu("v_cmp_lt_i32", f"s[{SMASK+2*i}:{SMASK+2*i+1}]", str(K), REM[p_])
    def mask(i, skip):
        a.salu(f"s_mov_b64 exec, s[{SMASK+2*i}:{SMASK+2*i+1}]")
        a.salu(f"s_cbranch_execz {skip}")
    for p_ in range(4):
        for c_ in range(2):
            lab = f"M_LD_{p_}{c_}"
            mask((p_ * 2 + c_) * 2, lab)
            a.bload("buffer_load_dwordx4", REC + (p_ * 2 + c_) * 4, 4, ROF[p_], SRD_W, "0", 128 * c_)
            a.label(lab)
    a.salu("s_mov_b64 exec, -1")
    a.salu(f"s_cmp_eq_u32 s{S_ROUND}, 0")
    a.salu("s_cbranch_scc0 M_NOSETUP")
    for kk in range(5):
        a.salu(f"s_add_u32 s39, s{S_W}, {8 * kk}")
        if kk == 4:
            a.salu("s_cmp_ge_u32 s39, 34")
            a.salu("s_cbranch_scc1 M_WL_SKIP")
        if kk == 3:
            a.salu("s_lshl_b32 s38, s39, 10")
            a.m0(f"s_add_u32 m0, s38, {WUL - 24576}")
        elif kk == 2:
            a.salu("s_lshl_b32 s38, s39, 10")
            a.m0(f"s_add_u32 m0, s38, {WVL - 16384}")
        else:
            a.salu(f"s_sub_u32 s38, s39, {8 if kk == 4 else 0}")
            a.salu("s_lshr_b32 s47, s38, 2")
            a.salu("s_lshl_b32 s47, s47, 13")
            a.salu("s_and_b32 s38, s38, 3")
            a.salu("s_lshl_b32 s38, s38, 10")
            a.salu("s_add_u32 s38, s38, s47")
            a.m0("s_add_u32 m0, s38, 4096")
        a.salu("s_lshl_b32 s39, s39, 10")
        a.salu(f"s_add_u32 s39, s39, {WS_WT}")
        a.bload_lds(VW, SRD_W, "s39")
    a.label("M_WL_SKIP")
    xtile_dma(VR)
    srd(a, SRD_E, 6, E * 32)
    srd(a, SRD_O, 8, N * 128)
    a.valu("v_and_b32", VM, "31", LANE)
    a.valu("v_lshrrev_b32", VHH, "5", LANE)
    a.valu("v_xor_b32", T[2], LANE, VQ)
    a.valu("v_and_b32", T[2], "1", T[2])
    a.valu("v_lshlrev_b32", EHALF, "4", T[2])
    a.valu("v_lshlrev_b32", VTB, "5", VHH)
    a.valu("v_add_u32", VTB, str(TBL), VTB)
    a.salu(f"s_mov_b32 s{S_C128}, 128")
    a.salu(f"s_mov_b32 s{S_M32}, 0xffffffe0")
    a.salu("s_mov_b32 s62, 0xbfb8aa3b")
    a.salu("s_mov_b32 s63, 0xbfb8aa3b")
    a.salu("s_mov_b32 s64, 1.0")
    a.salu("s_mov_b32 s65, 1.0")
    a.salu(f"s_lshl_b32 s{S_ME}, s{S_W}, 11")
    a.salu(f"s_add_u32 s{S_ME}, s{S_ME}, {ESTG}")
    a.salu(f"s_mov_b32 s52, {SRC16}")
    a.salu(f"s_mov_b32 s53, {DLS}")
    a.salu(f"s_mov_b32 s54, {EOFF}")
    a.valu("v_and_b32", T[0], "3", VM)
    a.valu("v_lshrrev_b32", T[1], "4", VM)
    a.valu("v_and_b32", T[2], "4", VM)
    a.valu("v_lshl_add_u32", T[2], T[0], "3", T[2])
    a.valu("v_lshl_add_u32", T[2], T[1], "1", T[2])
    a.valu("v_bfe_u32", T[3], VM, "3", "1")
    a.valu("v_add_u32", T[2], T[2], T[3])
    a.valu("v_lshl_add_u32", T[0], T[1], "2", T[0])
    a.valu("v_xor_b32", T[0], T[0], VHH)
    a.valu("v_lshlrev_b32", T[0], "4", T[0])
    a.valu("v_lshl_add_u32", T[0], T[2], "7", T[0])
    a.valu("v_add_u32", VA[0], f"s{S_MX}", T[0])
    for ks in range(1, 4):
        a.valu("v_xor_b32", VA[ks], str(32 * ks), VA[0])
    a.valu("v_xor_b32", T[0], T[3], VHH)
    a.valu("v_lshlrev_b32", T[0], "4", T[0])
    a.valu("v_lshl_add_u32", T[0], VM, "5", T[0])
    a.valu("v_add_u32", VE, f"s{S_ME}", T[0])
    a.valu("v_lshrrev_b32", T[0], "4", TID)
    a.valu("v_and_b32", T[1], "6", TID)
    a.valu("v_lshlrev_b32", T[1], "2", T[1])
    a.valu("v_bfe_u32", T[2], TID, "3", "1")
    a.valu("v_lshl_add_u32", T[1], T[2], "2", T[1])
    a.valu("v_and_b32", T[2], "1", TID)
    a.valu("v_lshl_add_u32", T[1], T[2], "1", T[1])
    a.valu("v_mov_b32", T[3], "0x3f80")
    a.valu("v_mov_b32", T[4], "0x3f800000")
    a.valu("v_cmp_eq_u32", "vcc", T[0], T[1])
    a.valu("v_cndmask_b32", T[3], "0", T[3], "vcc")
    a.valu("v_add_u32", T[1], "1", T[1])
    a.valu("v_cmp_eq_u32", "vcc", T[0], T[1])
    a.valu("v_cndmask_b32", T[4], "0", T[4], "vcc")
    a.valu("v_or_b32", T[3], T[3], T[4])
    a.valu("v_cmp_eq_u32", "vcc", "31", T[0])
    a.valu("v_mov_b32", T[4], "0")
    a.valu("v_cndmask_b32", T[3], T[3], T[4], "vcc")
    a.valu("v_lshlrev_b32", T[5], "2", TID)
    a.valu("v_add_u32", T[6], str(TBL), T[5])
    a.ds_write("ds_write_b32", T[6], T[3])
    a.valu("v_add_u32", T[5], str(CNT), T[5])
    a.valu("v_cmp_gt_u32", "vcc", str(NZERO), TID)
    a.salu("s_and_saveexec_b64 s[42:43], vcc")
    a.ds_write("ds_write_b32", T[5], T[4])
    a.salu("s_mov_b64 exec, s[42:43]")
    a.label("M_NOSETUP")
    a.valu("v_mov_b32", T[6], "1")
    a.salu(f"s_mov_b32 s38, {CNT}")
    a.salu(f"s_mov_b32 s47, {4 * TC}")
    a.valu("v_and_b32", T[5], "15", TID)
    a.valu("v_lshl_add_u32", T[5], T[5], "2", "s38")
    a.salu(f"s_cmp_eq_u32 s{S_ROUND}, 0")
    a.salu("s_cbranch_scc1 M_RW8")
    a.wait(vm=0)
    a.label("M_RW8")
    a.wait(vm=8, lgkm=0)
    a.barrier()
    stamp(2)
    for i, p_, K in recs():
        lab = f"M_AT_{i}"
        mask(i, lab)
        a.valu("v_bfe_u32", T[0], REC + 2 * i, "16", "3")
        a.valu("v_lshl_add_u32", BS + i, T[0], "6", T[5])
        a.ds_add_rtn(RANK + i, BS + i, T[6])
        a.label(lab)
    a.salu("s_mov_b64 exec, s[40:41]")
    a.salu("s_cbranch_execz M_AT_DONE")
    a.valu("v_mov_b32", T[0], str(FLAG))
    a.ds_write("ds_write_b32", T[0], T[6])
    a.label("M_AT_DONE")
    a.salu("s_mov_b64 exec, -1")
    a.wait(vm=0, lgkm=0)
    a.barrier()
    WA = {(ks, c): 112 + (ks * 2 + c) * 4 for ks in range(4) for c in range(2)}
    XT = [144, 148, 152, 156]
    a.salu(f"s_cmp_eq_u32 s{S_ROUND}, 0")
    a.salu("s_cbranch_scc0 M_NOWR")
    a.valu("v_and_b32", T[0], "63", TID)
    a.valu("v_lshlrev_b32", T[0], "4", T[0])
    def slot(k):
        return (k >> 2) * 8192 + 4096 + (k & 3) * 1024
    for dst, mb in ((WA, 0), (WB, 8)):
        for ks in range(4):
            for c in range(2):
                a.ds_read("ds_read_b128", dst[(ks, c)], 4, T[0], off=slot(mb + ks * 2 + c))
    for c in range(2):
        a.ds_read("ds_read_b128", WC[c], 4, T[0], off=slot(24 + c))
    for ks in range(4):
        a.ds_read("ds_read_b128", XT[ks], 4, VA[ks])
    a.label("M_NOWR")
    a.valu("v_and_b32", T[0], "63", TID)
    a.valu("v_lshl_add_u32", T[0], T[0], "2", "s38")
    a.ds_read("ds_read_b32", T[1], 1, T[0])
    a.ds_read("ds_read_b32", T[2], 1, T[0], off=256)
    a.valu("v_mov_b32", T[5], str(FLAG))
    a.ds_read("ds_read_b32", T[5], 1, T[5])
    a.valu("v_bfe_u32", T[6], TID, "4", "2")
    a.valu("v_mul_u32_u24", T[6], str(TC), T[6])
    a.wait(lgkm=0)
    a.valu("v_readfirstlane_b32", f"s{S_MORE}", T[5], flags={'readlane': 1})
    a.valu("v_mov_b32", T[3], T[1])
    a.valu("v_mov_b32", T[4], T[2])
    for sh in (1, 2, 4, 8):
        a.valu("v_add_u32_dpp", T[3], T[3], T[3], mods=f"row_shr:{sh} row_mask:0xf bank_mask:0xf bound_ctrl:0", flags={'dpp': 1})
        a.valu("v_add_u32_dpp", T[4], T[4], T[4], mods=f"row_shr:{sh} row_mask:0xf bank_mask:0xf bound_ctrl:0", flags={'dpp': 1})
    a.valu("v_max_u32", T[5], T[3], T[4])
    a.valu("v_cmp_lt_u32", "vcc", str(TC - 32), T[5])
    a.salu("s_cbranch_vccnz M_OVERFLOW")
    a.valu("v_sub_u32", T[1], T[3], T[1])
    a.valu("v_sub_u32", T[2], T[4], T[2])
    a.valu("v_add_u32", T[1], T[1], T[6])
    a.valu("v_add3_u32", T[2], T[2], T[6], "s47")
    a.ds_write("ds_write_b32", T[0], T[1], off=BASE - CNT)
    a.ds_write("ds_write_b32", T[0], T[2], off=BASE - CNT + 256)
    a.salu(f"s_and_b32 s55, s{S_W}, 3")
    a.salu("s_lshl_b32 s55, s55, 4")
    a.salu("s_add_u32 s55, s55, 15")
    a.valu("v_readlane_b32", "s51", T[3], "s55", flags={'readlane': 1})
    a.valu("v_readlane_b32", "s56", T[4], "s55", flags={'readlane': 1})
    a.salu(f"s_cmp_ge_u32 s{S_W}, 4")
    a.salu("s_cselect_b32 s51, s56, s51")
    a.salu("s_add_u32 s50, s51, 31")
    a.salu("s_and_b32 s50, s50, 0xffffffe0")
    a.salu(f"s_mul_i32 s49, s{S_W}, {TC}")
    a.wait(lgkm=0)
    for i, p_, K in recs():
        lab = f"M_BS_{i}"
        mask(i, lab)
        a.ds_read("ds_read_b32", BS + i, 1, BS + i, off=BASE - CNT)
        a.label(lab)
    a.salu("s_mov_b64 exec, -1")

    def place(pos, w0, w1, dl):
        a.valu("v_lshl_add_u32", T[4], pos, "1", "s52")
        a.ds_write("ds_write_b16", T[4], w0)
        a.valu("v_lshl_add_u32", T[6], pos, "2", "s54")
        a.ds_write("ds_write_b32", T[6], w1)

    a.valu("v_and_b32", T[3], "63", TID)
    a.salu("s_sub_u32 s55, s50, s51")
    a.salu("s_add_u32 s56, s49, s51")
    a.valu("v_cmp_gt_u32", "vcc", "s55", T[3])
    a.valu("v_add_u32", T[3], "s56", T[3])
    a.valu("v_mov_b32", T[0], "0")
    a.valu("v_mov_b32", T[1], "31")
    a.salu("s_mov_b64 exec, vcc")
    place(T[3], T[0], T[1], T[1])
    a.salu("s_mov_b64 exec, -1")
    a.wait(lgkm=0)
    for i, p_, K in recs():
        lab = f"M_PL_{i}"
        mask(i, lab)
        a.valu("v_add_u32", T[3], BS + i, RANK + i)
        place(T[3], REC + 2 * i, REC + 2 * i + 1, T[5])
        a.label(lab)
    a.salu("s_mov_b64 exec, -1")
    a.salu(f"s_lshr_b32 s{S_N}, s50, 5")
    a.salu(f"s_mov_b32 s{S_I}, 0")
    a.valu("v_and_b32", T[1], "63", TID)
    a.salu("s_lshl_b32 s55, s49, 1")
    a.salu("s_add_u32 s56, s55, s52")
    a.valu("v_lshrrev_b32", T[0], "3", T[1])
    a.valu("v_lshl_add_u32", VSRC, T[0], "3", "s56")
    a.salu("s_lshl_b32 s56, s49, 2")
    a.salu("s_add_u32 s56, s56, s54")
    def pi_of(dst, p):
        a.valu("v_and_b32", dst, "3", p)
        a.valu("v_lshrrev_b32", T[5], "1", p)
        a.valu("v_and_or_b32", dst, T[5], "12", dst)
        a.valu("v_lshlrev_b32", T[5], "2", p)
        a.valu("v_and_or_b32", dst, T[5], "16", dst)
    a.valu("v_lshrrev_b32", T[0], "1", T[1])
    pi_of(T[2], T[0])
    a.valu("v_lshl_add_u32", VEO, T[2], "2", "s56")
    a.valu("v_and_b32", T[0], "31", T[1])
    pi_of(T[2], T[0])
    a.valu("v_lshl_add_u32", VEM, T[2], "2", "s56")
    a.wait(lgkm=0)
    a.barrier()
    stamp(3)
    a.ds_read("ds_read_b64", PS, 2, VSRC)
    a.ds_read("ds_read_b32", PE, 1, VEO)
    a.ds_read("ds_read_b64", SD, 2, VSRC, off=64)
    a.ds_read("ds_read_b32", SD + 2, 1, VEO, off=128)
    a.ds_read("ds_read_b32", DM, 1, VEM)
    a.valu("v_and_b32", T[0], "31", TID)
    a.valu("v_lshl_add_u32", T[0], T[0], "6", VTB)
    a.ds_read("ds_read_b128", IDB[0], 4, T[0])
    a.ds_read("ds_read_b128", IDB[1], 4, T[0], off=16)
    a.wait(lgkm=0)
    a.salu(f"s_cmp_eq_u32 s{S_N}, 0")
    a.salu("s_cbranch_scc1 M_PRE_DONE")
    dma_issue(a, PS, PE)
    a.salu(f"s_cmp_eq_u32 s{S_N}, 1")
    a.salu("s_cbranch_scc1 M_PRE_DONE")
    a.salu(f"s_xor_b32 s{S_MX}, s{S_MX}, 4096")
    a.salu(f"s_xor_b32 s{S_ME}, s{S_ME}, 1024")
    dma_issue(a, SD, SD + 2)
    a.salu(f"s_xor_b32 s{S_MX}, s{S_MX}, 4096")
    a.salu(f"s_xor_b32 s{S_ME}, s{S_ME}, 1024")
    a.label("M_PRE_DONE")
    a.valu("v_add_u32", VSRC, "128", VSRC)
    a.valu("v_add_u32", VEO, "256", VEO)
    a.valu("v_add_u32", VEM, "128", VEM)
    a.salu(f"s_and_b32 s38, s{S_ROUND}, 0x7fffffff")
    a.salu("s_cmp_eq_u32 s38, 0")
    a.salu("s_cbranch_scc0 M_NOAT")
    for c, o in ((0, GG), (1, HH)):
        for ks in range(4):
            a.mfma32(o, XT[ks], WA[(ks, c)], None if ks == 0 else o)
    for c, o in ((0, GG), (1, HH)):
        if FOLD:
            for k in range(16):
                a.valu("v_mul_f32", o + k, "s62", o + k)
        for s in range(2):
            for k in range(4):
                a.valu("v_cvt_pk_bf16_f32", AT[(s, c)] + k, o + 8 * s + 2 * k, o + 8 * s + 2 * k + 1)
    for r in range(104, 168):
        a.valu("v_mov_b32", r, "0")
    a.label("M_NOAT")
    a.salu(f"s_lshl_b32 s57, s{S_W}, 2")
    a.salu(f"s_add_u32 s57, s57, {PROG}")
    a.valu("v_mov_b32", VPROG, "s57")
    a.fence()
    a.salu(f"s_cmp_ge_u32 s{S_I}, s{S_N}")
    a.salu("s_cbranch_scc1 M_LOOP_END")

    def operand_reads(tag):
        a.salu(f"s_add_u32 s39, s38, 1")
        a.salu(f"s_cmp_lt_u32 s39, s{S_N}")
        a.salu(f"s_cbranch_scc1 M_W5{tag}")
        a.wait(vm=0)
        a.salu(f"s_branch M_W0{tag}")
        a.label(f"M_W5{tag}")
        a.wait(vm=5)
        a.label(f"M_W0{tag}")
        a.valu("v_and_b32", T[0], "31", DM)
        a.valu("v_lshl_add_u32", TOH, T[0], "6", VTB)
        a.ds_read("ds_read_b128", OH[0], 4, TOH)
        a.ds_read("ds_read_b128", OH[1], 4, TOH, off=16)
        for ks in range(4):
            a.ds_read("ds_read_b128", X[ks], 4, VA[ks])
        a.ds_read("ds_read_b128", EOP, 4, VE)
        a.ds_read("ds_read_b64", PS, 2, VSRC)
        a.ds_read("ds_read_b32", PE, 1, VEO)
        a.ds_read("ds_read_b32", DM, 1, VEM)
        if BAL:
            a.salu(f"s_sub_u32 s57, s{S_N}, s38")
            a.valu("v_mov_b32", T[1], "s57")
            a.valu("v_xor_b32", T[2], "16", VPROG)
            a.ds_write("ds_write_b32", VPROG, T[1])
            a.ds_read("ds_read_b32", T[5], 1, T[2])
        for ks in range(4):
            a.valu("v_xor_b32", VA[ks], "0x1000", VA[ks])
        a.valu("v_xor_b32", VE, "0x400", VE)
        a.valu("v_add_u32", VSRC, "64", VSRC)
        a.valu("v_add_u32", VEO, "0x80", VEO)
        a.valu("v_add_u32", VEM, "0x80", VEM)

    VWV = TOH
    def wv_reads(c):
        a.valu("v_and_b32", T[6], "63", TID)
        a.valu("v_lshlrev_b32", T[6], "4", T[6])
        a.valu("v_add_u32", T[6], str(WVL), T[6])
        for ks in range(4):
            a.ds_read("ds_read_b128", WVB[ks], 4, T[6], off=(ks * 2 + c) * 1024)

    def g_mfmas(c):
        g = GG if c == 0 else GB
        l = [lambda ks=ks: a.mfma32(g, X[ks], WB[(ks, c)], None if ks == 0 else g) for ks in range(4)]
        l.append(lambda: a.mfma32(g, EOP, WC[c], g))
        l.append(lambda: a.mfma32(g, OH[0], AT[(0, c)], g))
        l.append(lambda: a.mfma32(g, OH[1], AT[(1, c)], g))
        return l
    def h_mfmas():
        return [lambda ks=ks: a.mfma32(HH, X[ks], WVB[ks], None if ks == 0 else HH) for ks in range(4)]
    def seg_mfmas(c):
        g = GG if c == 0 else GB
        return [lambda: a.mfma32(DEN[c], SD, g, DEN[c]), lambda: a.mfma32(DEN[c], SD + 4, g + 4, DEN[c]),
                lambda: a.mfma32(NUM[c], SD, HH, NUM[c]), lambda: a.mfma32(NUM[c], SD + 4, HH + 4, NUM[c])]
    def valu_ops(c):
        g = GG if c == 0 else GB
        v = []
        if not FOLD:
            v += [lambda k=k: a.valu("v_mul_f32", g + k, "s62", g + k) for k in range(16)]
        v += [lambda k=k: a.valu("v_exp_f32", g + k, g + k, trans=True) for k in range(16)]
        v += [lambda k=k: a.valu("v_add_f32", g + k, "1.0", g + k) for k in range(16)]
        v += [lambda k=k: a.valu("v_rcp_f32", g + k, g + k, trans=True) for k in range(16)]
        v += [lambda k=k: a.valu("v_mul_f32", HH + k, g + k, HH + k) for k in range(16)]
        v += [lambda k=k: a.valu("v_cvt_pk_bf16_f32", g + k, g + 2 * k, g + 2 * k + 1) for k in range(8)]
        v += [lambda k=k: a.valu("v_cvt_pk_bf16_f32", HH + k, HH + 2 * k, HH + 2 * k + 1) for k in range(8)]
        return v
    def run_stage(v, events):
        for i in range(len(v) + 1):
            for e in events.get(i, []):
                e()
            if i < len(v):
                v[i]()

    a.salu(f"s_mov_b32 s38, s{S_I}")
    operand_reads("P")
    wv_reads(0)
    for k in range(8):
        a.valu("v_mov_b32", SD + k, "0")
        a.valu("v_mov_b32", GB + k, "0")
        a.valu("v_mov_b32", HH + k, "0")
    a.wait(lgkm=0)
    for m in g_mfmas(0):
        m()
    a.fence()

    a.label("M_GROUP")
    def prio():
        if BAL:
            a.valu("v_readfirstlane_b32", "s58", T[5], flags={'readlane': 1})
            a.salu("s_cmp_ge_u32 s57, s58")
            a.salu("s_cbranch_scc1 M_PHI")
            a.salu("s_setprio 0")
            a.salu("s_branch M_PDONE")
            a.label("M_PHI")
            a.salu("s_setprio 1")
            a.label("M_PDONE")
    def dma_block():
        a.salu(f"s_add_u32 s38, s{S_I}, 2")
        a.salu(f"s_cmp_lt_u32 s38, s{S_N}")
        a.salu("s_cbranch_scc0 M_NODMA")
        dma_issue(a, PS, PE)
        a.salu("s_branch M_DMAD")
        a.label("M_NODMA")
        a.salu(f"s_cmp_eq_u32 s38, s{S_N}")
        a.salu("s_cbranch_scc0 M_DMAD")
        a.salu(f"s_cmp_eq_u32 s{S_MORE}, 0")
        a.salu("s_cbranch_scc0 M_DMAD")
        a.valu("v_bfe_u32", T[6], TID, "3", "3")
        xtile_dma(T[6])
        a.label("M_DMAD")
        a.salu(f"s_xor_b32 s{S_MX}, s{S_MX}, 4096")
        a.salu(f"s_xor_b32 s{S_ME}, s{S_ME}, 1024")
    def cvt_s():
        for k in range(8):
            a.valu("v_cvt_pk_bf16_f32", SD + k, HH + 2 * k, HH + 2 * k + 1)
    def next_ops():
        a.salu(f"s_add_u32 s38, s{S_I}, 1")
        a.salu(f"s_cmp_lt_u32 s38, s{S_N}")
        a.salu("s_cbranch_scc0 M_NOPF")
        operand_reads("L")
        a.label("M_NOPF")
    ev = {}
    def at(pos, f):
        if FOLD:
            pos = pos * 80 // 96
        ev.setdefault(pos, []).append(f)
    at(0, prio)
    sg = seg_mfmas(1)
    for k in range(4):
        at(4 * k, sg[k])
    at(16, lambda: a.mfma32(HH, OH[0], IDB[0], None))
    at(20, lambda: a.mfma32(HH, OH[1], IDB[1], HH))
    at(24, dma_block)
    at(36, cvt_s)
    hm = h_mfmas()
    for k in range(4):
        at(38 + 4 * k, hm[k])
    at(52, lambda: wv_reads(1))
    gm = g_mfmas(1)
    for k in range(7):
        at(54 + 5 * k, gm[k])
    run_stage(valu_ops(0), ev)
    ev = {}
    sg = seg_mfmas(0)
    for k in range(4):
        at(3 * k, sg[k])
    at(12, lambda: a.wait(lgkm=0))
    hm = h_mfmas()
    for k in range(4):
        at(12 + 4 * k, hm[k])
    at(26, next_ops)
    at(26, lambda: wv_reads(0))
    at(46, lambda: a.wait(lgkm=0))
    gm = g_mfmas(0)
    for k in range(7):
        at(46 + 5 * k, gm[k])
    run_stage(valu_ops(1), ev)
    a.salu(f"s_add_u32 s{S_I}, s{S_I}, 1")
    a.salu(f"s_cmp_lt_u32 s{S_I}, s{S_N}")
    a.salu("s_cbranch_scc1 M_GROUP")
    for m in seg_mfmas(1):
        m()

    a.label("M_LOOP_END")
    a.fence()
    if BAL:
        a.valu("v_mov_b32", T[1], "0")
        a.ds_write("ds_write_b32", VPROG, T[1])
        a.salu("s_setprio 0")
    stamp(4)
    a.salu(f"s_cmp_eq_u32 s{S_MORE}, 0")
    a.salu("s_cbranch_scc1 M_EPI")
    a.wait(vm=0, lgkm=0)
    a.barrier()
    a.valu("v_mov_b32", T[4], "0")
    a.valu("v_lshlrev_b32", T[5], "2", TID)
    a.valu("v_add_u32", T[5], str(CNT), T[5])
    a.valu("v_cmp_gt_u32", "vcc", str(NZERO), TID)
    a.salu("s_and_saveexec_b64 s[40:41], vcc")
    a.ds_write("ds_write_b32", T[5], T[4])
    a.salu("s_mov_b64 exec, s[40:41]")
    a.salu(f"s_add_u32 s{S_ROUND}, s{S_ROUND}, 1")
    a.salu(f"s_add_u32 s{S_DONE}, s{S_DONE}, s{S_STEP}")
    a.salu(f"s_and_b32 s38, s{S_N}, 1")
    a.salu("s_cmp_eq_u32 s38, 0")
    a.salu("s_cbranch_scc1 M_PAR_OK")
    for ks in range(4):
        a.valu("v_xor_b32", VA[ks], "0x1000", VA[ks])
    a.valu("v_xor_b32", VE, "0x400", VE)
    a.salu(f"s_xor_b32 s{S_MX}, s{S_MX}, 4096")
    a.salu(f"s_xor_b32 s{S_ME}, s{S_ME}, 1024")
    a.label("M_PAR_OK")
    a.wait(lgkm=0)
    a.fence()
    a.salu("s_branch M_ROUND")

    a.label("M_OVERFLOW")
    a.wait(vm=0, lgkm=0)
    a.barrier()
    a.valu("v_mov_b32", T[4], "0")
    a.valu("v_lshlrev_b32", T[5], "2", TID)
    a.valu("v_add_u32", T[5], str(CNT), T[5])
    a.valu("v_cmp_gt_u32", "vcc", str(NZERO), TID)
    a.salu("s_and_saveexec_b64 s[40:41], vcc")
    a.ds_write("ds_write_b32", T[5], T[4])
    a.salu("s_mov_b64 exec, s[40:41]")
    a.salu(f"s_mov_b32 s{S_STEP}, 4")
    a.salu(f"s_cmp_eq_u32 s{S_ROUND}, 0")
    a.salu("s_cbranch_scc0 M_OV2")
    a.salu(f"s_mov_b32 s{S_ROUND}, 0x80000000")
    a.label("M_OV2")
    a.wait(lgkm=0)
    a.fence()
    a.salu("s_branch M_ROUND")
    a.label("M_EPI")
    WU = {(ks, c): 40 + (ks * 2 + c) * 4 for ks in range(4) for c in range(2)}
    XE = [72, 76, 80, 84]
    XR = [88, 92, 96, 100]
    a.salu(f"s_cmp_ge_u32 s{S_N}, 2")
    a.salu("s_cbranch_scc1 M_EPI_HAVE")
    a.valu("v_bfe_u32", T[6], TID, "3", "3")
    xtile_dma(T[6])
    a.label("M_EPI_HAVE")
    LANE2, VM2, VHH2 = T[0], T[1], T[2]
    a.valu("v_and_b32", LANE2, "63", TID)
    a.valu("v_and_b32", VM2, "31", LANE2)
    a.valu("v_lshrrev_b32", VHH2, "5", LANE2)
    a.valu("v_lshlrev_b32", T[3], "4", LANE2)
    a.valu("v_add_u32", T[4], str(WUL), T[3])
    for ks in range(4):
        for c in range(2):
            a.ds_read("ds_read_b128", WU[(ks, c)], 4, T[4], off=(ks * 2 + c) * 1024)
    a.valu("v_lshrrev_b32", T[4], "3", LANE2)
    a.valu("v_and_b32", T[5], "3", T[4])
    a.valu("v_and_b32", T[6], "4", T[4])
    a.valu("v_lshl_add_u32", T[6], T[5], "3", T[6])
    a.valu("v_and_b32", T[4], "7", LANE2)
    a.valu("v_xor_b32", T[4], T[4], T[5])
    a.valu("v_lshlrev_b32", T[4], "4", T[4])
    a.valu("v_lshl_add_u32", T[4], T[6], "7", T[4])
    a.valu("v_add_u32", T[4], f"s{S_MX}", T[4])
    a.valu("v_xor_b32", T[5], "64", T[4])
    for c in range(2):
        for r in range(16):
            a.valu("v_add_f32", DEN[c] + r, "0x358637bd", DEN[c] + r)
    for c in range(2):
        for r in range(16):
            a.valu("v_rcp_f32", DEN[c] + r, DEN[c] + r, trans=True)
    for c in range(2):
        for r in range(16):
            a.valu("v_mul_f32", NUM[c] + r, NUM[c] + r, DEN[c] + r)
    a.wait(vm=0)
    for ks in range(4):
        a.ds_read("ds_read_b128", XE[ks], 4, VA[ks])
    a.ds_read("ds_read_b128", XR[0], 4, T[4])
    a.ds_read("ds_read_b128", XR[1], 4, T[4], off=128)
    a.ds_read("ds_read_b128", XR[2], 4, T[5], off=256)
    a.ds_read("ds_read_b128", XR[3], 4, T[5], off=384)
    a.wait(lgkm=0)
    for c in range(2):
        for ks in range(4):
            a.mfma32(NUM[c], XE[ks], WU[(ks, c)], NUM[c])
    a.salu(f"s_lshl_b32 s38, s{S_W}, 13")
    a.valu("v_lshlrev_b32", T[4], "10", VHH2)
    a.valu("v_lshl_add_u32", T[4], VM2, "2", T[4])
    a.valu("v_add_u32", T[4], "s38", T[4])
    a.valu("v_lshlrev_b32", T[5], "5", LANE2)
    a.valu("v_add_u32", T[5], "s38", T[5])
    for c in range(2):
        for r in range(16):
            if (r >> 2) == 3 and (r & 3) >= 1:
                continue
            a.valu("v_max_f32", NUM[c] + r, "0", NUM[c] + r)
            a.ds_write("ds_write_b32", T[4], NUM[c] + r, off=(8 * (r >> 2) + (r & 3)) * 256 + c * 128)
    a.wait(lgkm=0)
    ZR = [104, 112, 120, 128]
    for i in range(4):
        a.ds_read("ds_read_b128", ZR[i], 4, T[5], off=i * 2048)
        a.ds_read("ds_read_b128", ZR[i] + 4, 4, T[5], off=i * 2048 + 16)
    a.valu("v_mov_b32", T[6], "0x40000000")
    a.valu("v_cmp_gt_u32", "vcc", "8", LANE2)
    a.valu("v_cndmask_b32", T[6], T[6], T[3], "vcc")
    a.wait(vm=0, lgkm=0)
    for i in range(4):
        for k in range(4):
            a.valu("v_lshlrev_b32", T[0], "16", XR[i] + k)
            a.valu("v_and_b32", T[1], "0xffff0000", XR[i] + k)
            a.valu("v_add_f32", T[0], T[0], ZR[i] + 2 * k)
            a.valu("v_add_f32", T[1], T[1], ZR[i] + 2 * k + 1)
            a.valu("v_cvt_pk_bf16_f32", XR[i] + k, T[0], T[1])
        a.bstore("buffer_store_dwordx4", XR[i], 4, T[3] if i < 3 else T[6], SRD_O, "s46", i * 1024)
    if INSTR:
        stamp(5)
        a.salu(f"s_cmp_lg_u32 s2, {INSTR}")
        a.salu("s_cbranch_scc1 M_END")
        a.salu("s_load_dwordx2 s[64:65], s[0:1], 80")
        a.wait(lgkm=0)
        srd(a, 64, 64, 256)
        a.salu(f"s_lshl_b32 s70, s{S_W}, 5")
        a.valu("v_mov_b32", T[0], "0")
        for k, sreg in enumerate((44, 45, 100, 101, 60, 61)):
            a.salu(f"s_sub_u32 s71, s{sreg}, s44")
            if k == 0:
                a.salu(f"s_mov_b32 s71, s{S_N}")
            a.valu("v_mov_b32", T[1], "s71")
            a.bstore("buffer_store_dword", T[1], 1, T[0], 64, "s70", 4 * k)
    a.label("M_END")
    a.salu("s_endpgm")
    return a.text()


def kd(name, vg, sg):
    return f""".amdhsa_kernel {name}
  .amdhsa_next_free_vgpr {vg}
  .amdhsa_next_free_sgpr {sg}
  .amdhsa_accum_offset {(vg + 3) // 4 * 4}
  .amdhsa_group_segment_fixed_size 0
  .amdhsa_kernarg_size 96
  .amdhsa_user_sgpr_count 2
  .amdhsa_user_sgpr_kernarg_segment_ptr 1
  .amdhsa_system_sgpr_workgroup_id_x 1
.end_amdhsa_kernel
"""

def main():
    out = HEADER.format(mainlds=MAINLDS)
    if PF:
        out = out.replace("grid=(255,1,1)", "grid=(505,1,1)")
    out += gen_part()
    out += gen_main()
    out += '.section .rodata,"a"\n.p2align 6\n'
    out += kd("gp_part_kernel", 64, 64)
    out += ".p2align 6\n"
    out += kd("gp_main_kernel", 256, 102)
    path = sys.argv[1] if len(sys.argv) > 1 else "gather_scatter__edge_featured_mpnn_gatedgcn__graph.s"
    open(path, "w").write(out)
    print("wrote", path, len(out), "bytes; main lds", MAINLDS)

if __name__ == "__main__":
    main()
```

```python
import sys, os
sys.path.insert(0, os.path.dirname(__file__))
from asmlib import Asm, vr, sr, R

N = 50000; E = 800000
G = 250; CH = 3200; NB = 250; NPB = 200
WS_REC = 0
WS_TAB = 6400000
WS_WT = 6660096
WS_SIZE = 8 << 20
INSTR = int(os.environ.get("INSTR", "0"))
NOCOMP = int(os.environ.get("NOCOMP", "0"))
NOMEM = int(os.environ.get("NOMEM", "0"))
PRIO = int(os.environ.get("PRIO", "1"))
ENT = int(os.environ.get("ENT", "0"))
BAL = int(os.environ.get("BAL", "1"))
PK = int(os.environ.get("PK", "0"))
K1ST = os.environ.get("K1ST", "")
K1DIRECT = int(os.environ.get("K1DIRECT", "0"))
PF = int(os.environ.get("PF", "0"))
FOLD = int(os.environ.get("FOLD", "1"))

HEADER = """; Kernarg layout for this problem (96 bytes, ptrs only, base s[0:1]):
; @launch kernel=gp_part_kernel grid=(255,1,1) block=(640,1,1) lds=27648
; @launch kernel=gp_main_kernel grid=(256,1,1) block=(512,1,1) lds={mainlds}
.amdgcn_target "amdgcn-amd-amdhsa--gfx950"
.text
"""

def srd(a, d, base, nbytes):
    a.salu(f"s_mov_b32 s{d}, s{base}")
    a.salu(f"s_and_b32 s{d+1}, s{base+1}, 0xffff")
    a.salu(f"s_mov_b32 s{d+2}, {nbytes}")
    a.salu(f"s_mov_b32 s{d+3}, 0x00020000")


def gen_part():
    a = Asm()
    a.raw(".globl gp_part_kernel\n.p2align 8\n.type gp_part_kernel,@function\ngp_part_kernel:")
    a.salu("s_cmp_gt_u32 s2, 254")
    a.salu("s_cbranch_scc1 P_PF" if PF else "s_cbranch_scc1 P_END")
    a.salu("s_load_dwordx4 s[4:7], s[0:1], 16")
    a.salu("s_load_dwordx2 s[8:9], s[0:1], 88")
    a.salu("s_cmp_ge_u32 s2, 250")
    a.salu("s_cbranch_scc1 P_WEIGHTS")
    a.valu("v_lshlrev_b32", 1, "2", 0)
    a.valu("v_mov_b32", 2, "0")
    a.valu("v_mov_b32", 4, "1")
    a.valu("v_cmp_gt_u32", "vcc", "256", 0)
    a.salu("s_and_saveexec_b64 s[30:31], vcc")
    a.ds_write("ds_write_b32", 1, 2)
    a.salu("s_mov_b64 exec, s[30:31]")
    a.wait(lgkm=0)
    srd(a, 12, 4, E * 4)
    srd(a, 16, 6, E * 4)
    srd(a, 20, 8, WS_SIZE)
    a.salu("s_mul_i32 s3, s2, 12800")
    a.valu("v_add_u32", 3, "s3", 1)
    a.salu("s_mov_b32 s40, 5120")
    a.salu("s_mov_b32 s41, 10240")
    locs = [("0", 0), ("0", 2560), ("s40", 0), ("s40", 2560), ("s41", 0)]
    for k in range(5):
        a.bload("buffer_load_dword", 10 + k, 1, 3, 16, locs[k][0], locs[k][1])
    for k in range(5):
        a.bload("buffer_load_dword", 15 + k, 1, 3, 12, locs[k][0], locs[k][1])
    a.salu("s_mov_b32 s42, 21474837")
    a.valu("v_lshlrev_b32", 9, "3", 3)
    a.barrier()
    a.wait(vm=5)
    for k in range(5):
        d = 10 + k
        a.valu("v_mul_hi_u32", 5, d, "s42")
        a.valu("v_mul_u32_u24", 6, "200", 5)
        a.valu("v_sub_u32", 6, d, 6)
        a.valu("v_lshlrev_b32", 20 + k, "2", 5)
        a.ds_add_rtn(25 + k, 20 + k, 4)
        a.valu("v_mul_u32_u24", 7, "41", 6)
        a.valu("v_lshrrev_b32", 7, "10", 7)
        a.valu("v_mul_u32_u24", 8, "25", 7)
        a.valu("v_sub_u32", 8, 6, 8)
        a.valu("v_lshlrev_b32", 10 + k, "16", 7)
        a.valu("v_add3_u32", 31 + 2 * k, 9, 8, "s%d" % (44 + k)) if False else None
        a.valu("v_add_u32", 31 + 2 * k, str(k * 20480), 9)
        a.valu("v_or_b32", 31 + 2 * k, 31 + 2 * k, 8)
    a.wait(vm=0)
    for k in range(5):
        a.valu("v_or_b32", 30 + 2 * k, 10 + k, 15 + k)
    a.wait(lgkm=0)
    a.barrier()
    a.valu("v_cmp_gt_u32", "vcc", "64", 0)
    a.salu("s_and_saveexec_b64 s[30:31], vcc")
    a.salu("s_cbranch_execz P_SCAN_DONE")
    a.valu("v_lshlrev_b32", 40, "4", 0)
    a.ds_read("ds_read_b128", 44, 4, 40)
    a.wait(lgkm=0)
    a.valu("v_add_u32", 48, 44, 45)
    a.valu("v_add_u32", 49, 48, 46)
    a.valu("v_add_u32", 50, 49, 47)
    a.valu("v_mov_b32", 51, 50)
    for sh in (1, 2, 4, 8):
        a.valu("v_add_u32_dpp", 51, 51, 51, mods=f"row_shr:{sh} row_mask:0xf bank_mask:0xf bound_ctrl:0", flags={'dpp': 1})
    a.valu("v_add_u32_dpp", 51, 51, 51, mods="row_bcast:15 row_mask:0xa bank_mask:0xf", flags={'dpp': 1})
    a.valu("v_add_u32_dpp", 51, 51, 51, mods="row_bcast:31 row_mask:0xc bank_mask:0xf", flags={'dpp': 1})
    a.valu("v_sub_u32", 52, 51, 50)
    a.valu("v_add_u32", 53, 52, 44)
    a.valu("v_add_u32", 54, 52, 48)
    a.valu("v_add_u32", 55, 52, 49)
    a.ds_write("ds_write_b128", 40, 52, 4, off=1024)
    a.salu("s_lshl_b32 s43, s2, 2")
    a.salu(f"s_add_u32 s43, s43, {WS_TAB}")
    a.valu("v_lshlrev_b32", 41, "12", 0)
    a.valu("v_cmp_gt_u32", "vcc", "63", 0)
    a.salu("s_and_b64 exec, exec, vcc")
    for j in range(3):
        a.bstore("buffer_store_dword", 52 + j, 1, 41, 20, "s43", j * 1024)
    a.valu("v_cmp_gt_u32", "vcc", "62", 0)
    a.salu("s_and_b64 exec, exec, vcc")
    a.bstore("buffer_store_dword", 55, 1, 41, 20, "s43", 3072)
    a.wait(lgkm=0)
    a.label("P_SCAN_DONE")
    a.salu("s_mov_b64 exec, s[30:31]")
    a.barrier()
    for k in range(5):
        a.ds_read("ds_read_b32", 44 + k, 1, 20 + k, off=1024)
    a.wait(lgkm=0)
    if K1DIRECT:
        a.salu("s_mul_i32 s44, s2, 25600")
        for k in range(5):
            a.valu("v_add_u32", 5 + k, 44 + k, 25 + k)
            a.valu("v_lshlrev_b32", 5 + k, "3", 5 + k)
            a.bstore("buffer_store_dwordx2", 30 + 2 * k, 2, 5 + k, 20, "s44")
        a.salu("s_endpgm")
    for k in range(5):
        a.valu("v_add_u32", 5, 44 + k, 25 + k)
        a.valu("v_lshlrev_b32", 5, "3", 5)
        a.ds_write("ds_write_b64", 5, 30 + 2 * k, 2, off=2048)
    a.wait(lgkm=0)
    a.barrier()
    a.valu("v_lshlrev_b32", 5, "4", 0)
    a.salu("s_mul_i32 s44, s2, 25600")
    a.ds_read("ds_read_b128", 44, 4, 5, off=2048)
    a.ds_read("ds_read_b128", 48, 4, 5, off=2048 + 10240)
    a.valu("v_cmp_gt_u32", "vcc", "320", 0)
    a.salu("s_and_saveexec_b64 s[30:31], vcc")
    a.ds_read("ds_read_b128", 52, 4, 5, off=2048 + 20480)
    a.salu("s_mov_b64 exec, s[30:31]")
    a.salu("s_add_u32 s45, s44, 10240")
    a.salu("s_add_u32 s46, s44, 20480")
    a.wait(lgkm=2)
    a.bstore("buffer_store_dwordx4", 44, 4, 5, 20, "s44", extra=K1ST)
    a.wait(lgkm=1)
    a.bstore("buffer_store_dwordx4", 48, 4, 5, 20, "s45", extra=K1ST)
    a.wait(lgkm=0)
    a.salu("s_and_saveexec_b64 s[30:31], vcc")
    a.bstore("buffer_store_dwordx4", 52, 4, 5, 20, "s46", extra=K1ST)
    a.salu("s_endpgm")

    a.label("P_WEIGHTS")
    a.salu("s_sub_u32 s3, s2, 250")
    a.salu("s_lshl_b32 s40, s3, 13")
    a.salu(f"s_add_u32 s40, s40, {WS_WT}")
    a.salu("s_mov_b32 s41, 32")
    a.salu("s_cmp_eq_u32 s3, 1")
    a.salu("s_cselect_b32 s41, 40, s41")
    a.salu("s_cmp_eq_u32 s3, 2")
    a.salu("s_cselect_b32 s41, 64, s41")
    a.salu("s_cmp_eq_u32 s3, 3")
    a.salu("s_cselect_b32 s41, 56, s41")
    a.salu("s_cmp_eq_u32 s3, 4")
    a.salu("s_cselect_b32 s41, 48, s41")
    a.salu("s_movk_i32 s42, 0x2000")
    a.salu("s_cselect_b32 s42, 2048, s42")
    a.salu("s_load_dwordx2 s[12:13], s[0:1], s41")
    a.wait(lgkm=0)
    srd(a, 20, 8, WS_SIZE)
    srd(a, 28, 12, 0)
    a.salu("s_mov_b32 s30, s42")
    for j in range(7):
        a.valu("v_add_u32", 1, str(640 * j), 0)
        a.valu("v_lshlrev_b32", 2, "1", 1)
        a.bload("buffer_load_ushort", 10 + j, 1, 2, 28)
        a.valu("v_lshrrev_b32", 3, "10", 1)
        a.valu("v_bfe_u32", 4, 1, "5", "1")
        a.valu("v_lshl_add_u32", 3, 3, "1", 4)
        a.valu("v_bfe_u32", 4, 1, "9", "1")
        a.valu("v_lshl_add_u32", 3, 3, "1", 4)
        a.valu("v_and_b32", 4, "31", 1)
        a.valu("v_lshl_add_u32", 3, 3, "5", 4)
        a.valu("v_bfe_u32", 4, 1, "6", "3")
        a.valu("v_lshl_add_u32", 3, 3, "3", 4)
        a.valu("v_lshlrev_b32", 3, "1", 3)
        a.valu("v_mov_b32", 5, "0x40000000")
        a.valu("v_cmp_gt_u32", "vcc", "s42", 2)
        a.valu("v_cndmask_b32", 20 + j, 5, 3, "vcc")
    a.wait(vm=0)
    if FOLD:
        a.salu("s_mov_b32 s44, 1.0")
        a.salu("s_cmp_eq_u32 s3, 1")
        a.salu("s_cselect_b32 s44, 0xbfb8aa3b, s44")
        a.salu("s_cmp_eq_u32 s3, 4")
        a.salu("s_cselect_b32 s44, 0xbfb8aa3b, s44")
        for j in range(7):
            a.valu("v_lshlrev_b32", 10 + j, "16", 10 + j)
            a.valu("v_mul_f32", 10 + j, "s44", 10 + j)
            a.valu("v_cvt_pk_bf16_f32", 10 + j, 10 + j, 10 + j)
    for j in range(7):
        a.bstore("buffer_store_short", 10 + j, 1, 20 + j, 20, "s40")
    a.label("P_END")
    a.salu("s_endpgm")
    if PF:
        a.label("P_PF")
        a.salu("s_sub_u32 s3, s2, 255")
        a.salu("s_cmp_ge_u32 s3, 250")
        a.salu("s_cbranch_scc1 P_END")
        a.salu("s_load_dwordx4 s[4:7], s[0:1], 0")
        a.wait(lgkm=0)
        srd(a, 12, 4, N * 128)
        srd(a, 16, 6, E * 32)
        a.valu("v_lshlrev_b32", 1, "4", 0)
        a.salu("s_mul_i32 s20, s3, 102400")
        for j in range(10):
            a.bload("buffer_load_dwordx4", 4 + 4 * j, 4, 1, 16, "s20")
            a.salu("s_add_u32 s20, s20, 10240")
        a.salu("s_mul_i32 s20, s3, 25600")
        for j in range(3):
            a.bload("buffer_load_dwordx4", 44 + 4 * j, 4, 1, 12, "s20")
            a.salu("s_add_u32 s20, s20, 10240")
        a.wait(vm=0)
        a.salu("s_endpgm")
    return a.text()


CAP = 250 * 32 + 256
XSTG = 0
ESTG = 65536
SRC16 = 81920
DLS = SRC16 + CAP * 2
EOFF = DLS + CAP * 2
CNT = EOFF + CAP * 4
TC = CAP // 8
BASE = CNT + 512
PROG = CNT + 1024
FLAG = CNT + 1088
TBL = CNT + 1152
NZERO = 288
WUL = TBL + 2048
MAINLDS = WUL + 8192
WVL = DLS
WTMP = SRC16

TID = 0
T = list(range(2, 9))
VTB = 9
IDB = [10, 100]
SWZ = [14, 15, 1, 31]
EHALF = 16
VA = [17, 18, 19, 20]
VE, VPROG, VEM, VSRC, VEO = 21, 22, 23, 24, 25
PS, PE, DM, TOH = 26, 28, 29, 30
SD = 32
X = [40, 44, 48, 52]
EOP = 56
OH = [60, 64]
GG, HH = 68, 84
DEN = [104, 120]
NUM = [136, 152]
WB = {(ks, c): 168 + (ks * 2 + c) * 4 for ks in range(4) for c in range(2)}
GB = 200
WVB = [216, 220, 224, 228]
WC = [232, 236]
AT = {(s, c): 240 + (s * 2 + c) * 4 for s in range(2) for c in range(2)}
SRD_X, SRD_E, SRD_O, SRD_W = 12, 16, 20, 24
S_W, S_ROUND, S_MORE, S_C128 = 28, 29, 30, 31
S_I, S_N = 32, 33
S_MX, S_ME = 36, 37
S_M32 = 59
S_DONE, S_STEP = 34, 35
S_T = 48
PAIR = int(os.environ.get('PAIR', '1'))
SMASK = 66


def dma_issue(a, ps, pe):
    a.valu("v_mad_u32_u16", T[0], ps, f"s{S_C128}", SWZ[0])
    a.valu("v_mad_u32_u16", T[1], ps, f"s{S_C128}", SWZ[1], mods="op_sel:[1,0,0,0]")
    a.valu("v_mad_u32_u16", T[2], ps + 1, f"s{S_C128}", SWZ[2])
    a.valu("v_mad_u32_u16", T[3], ps + 1, f"s{S_C128}", SWZ[3], mods="op_sel:[1,0,0,0]")
    a.valu("v_and_or_b32", T[4], pe, f"s{S_M32}", EHALF)
    if NOMEM:
        for j in range(5):
            a.valu("v_and_b32", T[j], "0x3ff", T[j])
    for j in range(4):
        if j == 0:
            a.m0(f"s_mov_b32 m0, s{S_MX}")
        else:
            a.m0(f"s_add_u32 m0, s{S_MX}, {1024*j}")
        a.bload_lds(T[j], SRD_X)
    a.m0(f"s_mov_b32 m0, s{S_ME}")
    a.bload_lds(T[4], SRD_E, extra=" nt" if ENT else "")


def gen_main():
    a = Asm()
    def stamp(k):
        if INSTR:
            a.salu("s_memtime s[98:99]")
            a.wait(lgkm=0)
            a.salu(f"s_mov_b32 s{(44, 45, 100, 101, 60, 61)[k]}, s98")
    a.raw(".globl gp_main_kernel\n.p2align 8\n.type gp_main_kernel,@function\ngp_main_kernel:")
    a.salu("s_cmp_ge_u32 s2, 256")
    a.salu("s_cbranch_scc1 M_END")
    a.salu("s_and_b32 s3, s2, 7")
    a.salu("s_lshl_b32 s3, s3, 5")
    a.salu("s_lshr_b32 s2, s2, 3")
    a.salu("s_add_u32 s2, s2, s3")
    a.salu("s_cmp_ge_u32 s2, 250")
    a.salu("s_cbranch_scc1 M_END")
    a.salu("s_load_dwordx2 s[10:11], s[0:1], 88")
    a.salu("s_load_dwordx4 s[4:7], s[0:1], 0")
    a.salu("s_load_dwordx2 s[8:9], s[0:1], 72")
    stamp(0)
    LANE, VQ, VM, VHH, VW, VR = 160, 161, 162, 163, 164, 165
    a.valu("v_and_b32", LANE, "63", TID)
    a.valu("v_lshrrev_b32", T[0], "6", TID)
    a.valu("v_readfirstlane_b32", f"s{S_W}", T[0], flags={'readlane': 1})
    a.valu("v_lshlrev_b32", VW, "4", LANE)
    a.valu("v_lshrrev_b32", VQ, "4", LANE)
    a.valu("v_lshrrev_b32", VR, "3", LANE)
    a.salu(f"s_mov_b32 s{S_ROUND}, 0")
    a.salu(f"s_mov_b32 s{S_DONE}, 0")
    a.salu(f"s_mov_b32 s{S_STEP}, 32")
    a.salu(f"s_lshl_b32 s{S_MX}, s{S_W}, 13")
    a.salu("s_mul_i32 s42, s2, 200")
    a.salu(f"s_mul_i32 s43, s{S_W}, 25")
    a.salu("s_add_u32 s42, s42, s43")
    a.salu("s_lshl_b32 s46, s42, 7")
    a.valu("v_and_b32", T[2], "7", LANE)
    a.valu("v_and_b32", T[3], "1", VQ)
    a.valu("v_lshlrev_b32", T[3], "2", T[3])
    a.valu("v_xor_b32", T[3], T[2], T[3])
    a.valu("v_lshlrev_b32", SWZ[0], "4", T[3])
    for j in range(1, 4):
        a.valu("v_xor_b32", SWZ[j], str(16 * j), SWZ[0])
    a.wait(lgkm=0)
    srd(a, SRD_W, 10, WS_SIZE)
    srd(a, SRD_X, 4, N * 128)

    def xtile_dma(vr_):
        a.valu("v_and_b32", T[0], "2", vr_)
        a.valu("v_lshlrev_b32", T[0], "3", T[0])
        a.valu("v_and_b32", T[1], "1", vr_)
        a.valu("v_lshl_add_u32", T[0], T[1], "3", T[0])
        a.valu("v_lshrrev_b32", T[1], "2", vr_)
        a.valu("v_lshl_add_u32", T[0], T[1], "2", T[0])
        a.valu("v_lshlrev_b32", T[0], "7", T[0])
        for j in range(4):
            a.valu("v_add_u32", T[1 + j], T[0], SWZ[j])
        for j in range(4):
            a.salu(f"s_add_u32 s38, s46, {128 * j}")
            if j == 0:
                a.m0(f"s_mov_b32 m0, s{S_MX}")
            else:
                a.m0(f"s_add_u32 m0, s{S_MX}, {1024*j}")
            a.bload_lds(T[1 + j], SRD_X, "s38")

    REC = 40; RANK = 72; BS = 88
    REM = [32, 33, 34, 35]; ROF = [36, 37, 38, 39]
    a.label("M_ROUND")
    a.valu("v_lshrrev_b32", T[0], "3", TID)
    a.valu("v_lshlrev_b32", T[1], "2", T[0])
    a.salu("s_lshl_b32 s38, s2, 10")
    a.salu(f"s_add_u32 s38, s38, {WS_TAB}")
    for p_ in range(4):
        a.bload("buffer_load_dword", ROF[p_], 1, T[1], SRD_W, "s38", 256 * p_)
        a.bload("buffer_load_dword", REM[p_], 1, T[1], SRD_W, "s38", 1024 + 256 * p_)
    a.valu("v_lshrrev_b32", T[0], "3", TID)
    a.valu("v_and_b32", T[2], "7", TID)
    a.valu("v_lshlrev_b32", T[2], "1", T[2])
    a.valu("v_add_u32", T[6], f"s{S_DONE}", T[2])
    a.wait(vm=0)
    stamp(1)
    for p_ in range(4):
        a.valu("v_sub_u32", REM[p_], REM[p_], ROF[p_])
        if p_ == 3:
            a.valu("v_cmp_gt_u32", "vcc", str(250 - 192), T[0])
            a.valu("v_cndmask_b32", REM[p_], "0", REM[p_], "vcc")
        a.valu("v_subrev_u32", REM[p_], f"s{S_DONE}", REM[p_])
        if p_ == 0:
            a.valu("v_mov_b32", T[5], REM[p_])
        else:
            a.valu("v_max_i32", T[5], T[5], REM[p_])
        a.valu("v_min_i32", REM[p_], f"s{S_STEP}", REM[p_])
        a.valu("v_sub_u32", REM[p_], REM[p_], T[2])
        a.valu("v_add_u32", T[3], str(64 * p_), T[0])
        a.valu("v_mul_u32_u24", T[3], "3200", T[3])
        a.valu("v_add3_u32", T[3], T[3], ROF[p_], T[6])
        a.valu("v_lshlrev_b32", ROF[p_], "3", T[3])
    a.valu("v_cmp_lt_i32", "s[40:41]", f"s{S_STEP}", T[5])
    def recs():
        for p_ in range(4):
            for c_ in range(2):
                for h_ in range(2):
                    yield (p_ * 2 + c_) * 2 + h_, p_, 16 * c_ + h_
    for i, p_, K in recs():
        a.valu("v_cmp_lt_i32", f"s[{SMASK+2*i}:{SMASK+2*i+1}]", str(K), REM[p_])
    def mask(i, skip):
        a.salu(f"s_mov_b64 exec, s[{SMASK+2*i}:{SMASK+2*i+1}]")
        a.salu(f"s_cbranch_execz {skip}")
    for p_ in range(4):
        for c_ in range(2):
            lab = f"M_LD_{p_}{c_}"
            mask((p_ * 2 + c_) * 2, lab)
            a.bload("buffer_load_dwordx4", REC + (p_ * 2 + c_) * 4, 4, ROF[p_], SRD_W, "0", 128 * c_)
            a.label(lab)
    a.salu("s_mov_b64 exec, -1")
    a.salu(f"s_cmp_eq_u32 s{S_ROUND}, 0")
    a.salu("s_cbranch_scc0 M_NOSETUP")
    for kk in range(5):
        a.salu(f"s_add_u32 s39, s{S_W}, {8 * kk}")
        if kk == 4:
            a.salu("s_cmp_ge_u32 s39, 34")
            a.salu("s_cbranch_scc1 M_WL_SKIP")
        if kk == 3:
            a.salu("s_lshl_b32 s38, s39, 10")
            a.m0(f"s_add_u32 m0, s38, {WUL - 24576}")
        elif kk == 2:
            a.salu("s_lshl_b32 s38, s39, 10")
            a.m0(f"s_add_u32 m0, s38, {WVL - 16384}")
        else:
            a.salu(f"s_sub_u32 s38, s39, {8 if kk == 4 else 0}")
            a.salu("s_lshr_b32 s47, s38, 2")
            a.salu("s_lshl_b32 s47, s47, 13")
            a.salu("s_and_b32 s38, s38, 3")
            a.salu("s_lshl_b32 s38, s38, 10")
            a.salu("s_add_u32 s38, s38, s47")
            a.m0("s_add_u32 m0, s38, 4096")
        a.salu("s_lshl_b32 s39, s39, 10")
        a.salu(f"s_add_u32 s39, s39, {WS_WT}")
        a.bload_lds(VW, SRD_W, "s39")
    a.label("M_WL_SKIP")
    xtile_dma(VR)
    srd(a, SRD_E, 6, E * 32)
    srd(a, SRD_O, 8, N * 128)
    a.valu("v_and_b32", VM, "31", LANE)
    a.valu("v_lshrrev_b32", VHH, "5", LANE)
    a.valu("v_xor_b32", T[2], LANE, VQ)
    a.valu("v_and_b32", T[2], "1", T[2])
    a.valu("v_lshlrev_b32", EHALF, "4", T[2])
    a.valu("v_lshlrev_b32", VTB, "5", VHH)
    a.valu("v_add_u32", VTB, str(TBL), VTB)
    a.salu(f"s_mov_b32 s{S_C128}, 128")
    a.salu(f"s_mov_b32 s{S_M32}, 0xffffffe0")
    a.salu("s_mov_b32 s62, 0xbfb8aa3b")
    a.salu("s_mov_b32 s63, 0xbfb8aa3b")
    a.salu("s_mov_b32 s64, 1.0")
    a.salu("s_mov_b32 s65, 1.0")
    a.salu(f"s_lshl_b32 s{S_ME}, s{S_W}, 11")
    a.salu(f"s_add_u32 s{S_ME}, s{S_ME}, {ESTG}")
    a.salu(f"s_mov_b32 s52, {SRC16}")
    a.salu(f"s_mov_b32 s53, {DLS}")
    a.salu(f"s_mov_b32 s54, {EOFF}")
    a.valu("v_and_b32", T[0], "3", VM)
    a.valu("v_lshrrev_b32", T[1], "4", VM)
    a.valu("v_and_b32", T[2], "4", VM)
    a.valu("v_lshl_add_u32", T[2], T[0], "3", T[2])
    a.valu("v_lshl_add_u32", T[2], T[1], "1", T[2])
    a.valu("v_bfe_u32", T[3], VM, "3", "1")
    a.valu("v_add_u32", T[2], T[2], T[3])
    a.valu("v_lshl_add_u32", T[0], T[1], "2", T[0])
    a.valu("v_xor_b32", T[0], T[0], VHH)
    a.valu("v_lshlrev_b32", T[0], "4", T[0])
    a.valu("v_lshl_add_u32", T[0], T[2], "7", T[0])
    a.valu("v_add_u32", VA[0], f"s{S_MX}", T[0])
    for ks in range(1, 4):
        a.valu("v_xor_b32", VA[ks], str(32 * ks), VA[0])
    a.valu("v_xor_b32", T[0], T[3], VHH)
    a.valu("v_lshlrev_b32", T[0], "4", T[0])
    a.valu("v_lshl_add_u32", T[0], VM, "5", T[0])
    a.valu("v_add_u32", VE, f"s{S_ME}", T[0])
    a.valu("v_lshrrev_b32", T[0], "4", TID)
    a.valu("v_and_b32", T[1], "6", TID)
    a.valu("v_lshlrev_b32", T[1], "2", T[1])
    a.valu("v_bfe_u32", T[2], TID, "3", "1")
    a.valu("v_lshl_add_u32", T[1], T[2], "2", T[1])
    a.valu("v_and_b32", T[2], "1", TID)
    a.valu("v_lshl_add_u32", T[1], T[2], "1", T[1])
    a.valu("v_mov_b32", T[3], "0x3f80")
    a.valu("v_mov_b32", T[4], "0x3f800000")
    a.valu("v_cmp_eq_u32", "vcc", T[0], T[1])
    a.valu("v_cndmask_b32", T[3], "0", T[3], "vcc")
    a.valu("v_add_u32", T[1], "1", T[1])
    a.valu("v_cmp_eq_u32", "vcc", T[0], T[1])
    a.valu("v_cndmask_b32", T[4], "0", T[4], "vcc")
    a.valu("v_or_b32", T[3], T[3], T[4])
    a.valu("v_cmp_eq_u32", "vcc", "31", T[0])
    a.valu("v_mov_b32", T[4], "0")
    a.valu("v_cndmask_b32", T[3], T[3], T[4], "vcc")
    a.valu("v_lshlrev_b32", T[5], "2", TID)
    a.valu("v_add_u32", T[6], str(TBL), T[5])
    a.ds_write("ds_write_b32", T[6], T[3])
    a.valu("v_add_u32", T[5], str(CNT), T[5])
    a.valu("v_cmp_gt_u32", "vcc", str(NZERO), TID)
    a.salu("s_and_saveexec_b64 s[42:43], vcc")
    a.ds_write("ds_write_b32", T[5], T[4])
    a.salu("s_mov_b64 exec, s[42:43]")
    a.label("M_NOSETUP")
    a.valu("v_mov_b32", T[6], "1")
    a.salu(f"s_mov_b32 s38, {CNT}")
    a.salu(f"s_mov_b32 s47, {4 * TC}")
    a.valu("v_and_b32", T[5], "15", TID)
    a.valu("v_lshl_add_u32", T[5], T[5], "2", "s38")
    a.salu(f"s_cmp_eq_u32 s{S_ROUND}, 0")
    a.salu("s_cbranch_scc1 M_RW8")
    a.wait(vm=0)
    a.label("M_RW8")
    a.wait(vm=8, lgkm=0)
    a.barrier()
    stamp(2)
    for i, p_, K in recs():
        lab = f"M_AT_{i}"
        mask(i, lab)
        a.valu("v_bfe_u32", T[0], REC + 2 * i, "16", "3")
        a.valu("v_lshl_add_u32", BS + i, T[0], "6", T[5])
        a.ds_add_rtn(RANK + i, BS + i, T[6])
        a.label(lab)
    a.salu("s_mov_b64 exec, s[40:41]")
    a.salu("s_cbranch_execz M_AT_DONE")
    a.valu("v_mov_b32", T[0], str(FLAG))
    a.ds_write("ds_write_b32", T[0], T[6])
    a.label("M_AT_DONE")
    a.salu("s_mov_b64 exec, -1")
    a.wait(vm=0, lgkm=0)
    a.barrier()
    WA = {(ks, c): 112 + (ks * 2 + c) * 4 for ks in range(4) for c in range(2)}
    XT = [144, 148, 152, 156]
    a.salu(f"s_cmp_eq_u32 s{S_ROUND}, 0")
    a.salu("s_cbranch_scc0 M_NOWR")
    a.valu("v_and_b32", T[0], "63", TID)
    a.valu("v_lshlrev_b32", T[0], "4", T[0])
    def slot(k):
        return (k >> 2) * 8192 + 4096 + (k & 3) * 1024
    for dst, mb in ((WA, 0), (WB, 8)):
        for ks in range(4):
            for c in range(2):
                a.ds_read("ds_read_b128", dst[(ks, c)], 4, T[0], off=slot(mb + ks * 2 + c))
    for c in range(2):
        a.ds_read("ds_read_b128", WC[c], 4, T[0], off=slot(24 + c))
    a.label("M_NOWR")
    a.valu("v_and_b32", T[0], "63", TID)
    a.valu("v_lshl_add_u32", T[0], T[0], "2", "s38")
    a.ds_read("ds_read_b32", T[1], 1, T[0])
    a.ds_read("ds_read_b32", T[2], 1, T[0], off=256)
    a.valu("v_mov_b32", T[5], str(FLAG))
    a.ds_read("ds_read_b32", T[5], 1, T[5])
    a.valu("v_bfe_u32", T[6], TID, "4", "2")
    a.valu("v_mul_u32_u24", T[6], str(TC), T[6])
    a.wait(lgkm=0)
    a.valu("v_readfirstlane_b32", f"s{S_MORE}", T[5], flags={'readlane': 1})
    a.valu("v_mov_b32", T[3], T[1])
    a.valu("v_mov_b32", T[4], T[2])
    for sh in (1, 2, 4, 8):
        a.valu("v_add_u32_dpp", T[3], T[3], T[3], mods=f"row_shr:{sh} row_mask:0xf bank_mask:0xf bound_ctrl:0", flags={'dpp': 1})
        a.valu("v_add_u32_dpp", T[4], T[4], T[4], mods=f"row_shr:{sh} row_mask:0xf bank_mask:0xf bound_ctrl:0", flags={'dpp': 1})
    a.valu("v_max_u32", T[5], T[3], T[4])
    a.valu("v_cmp_lt_u32", "vcc", str(TC - 32), T[5])
    a.salu("s_cbranch_vccnz M_OVERFLOW")
    a.valu("v_sub_u32", T[1], T[3], T[1])
    a.valu("v_sub_u32", T[2], T[4], T[2])
    a.valu("v_add_u32", T[1], T[1], T[6])
    a.valu("v_add3_u32", T[2], T[2], T[6], "s47")
    a.ds_write("ds_write_b32", T[0], T[1], off=BASE - CNT)
    a.ds_write("ds_write_b32", T[0], T[2], off=BASE - CNT + 256)
    a.salu(f"s_and_b32 s55, s{S_ROUND}, 0x7fffffff")
    a.salu("s_cmp_eq_u32 s55, 0")
    a.salu("s_cbranch_scc0 M_NOASSIGN")
    a.salu(f"s_mov_b32 s{S_T}, s{S_W}")
    if PAIR:
        a.valu("v_and_b32", T[5], "15", TID)
        a.valu("v_cmp_eq_u32", "vcc", "15", T[5])
        a.valu("v_bfe_u32", T[5], TID, "4", "2")
        a.valu("v_lshlrev_b32", T[5], "2", T[5])
        a.valu("v_add_u32", T[5], str(FLAG + 16), T[5])
        a.salu("s_mov_b64 exec, vcc")
        a.ds_write("ds_write_b32", T[5], T[3])
        a.ds_write("ds_write_b32", T[5], T[4], off=16)
        a.salu("s_mov_b64 exec, -1")
        a.valu("v_and_b32", T[5], "7", TID)
        a.valu("v_lshlrev_b32", T[6], "2", T[5])
        a.valu("v_add_u32", T[6], str(FLAG + 16), T[6])
        a.wait(lgkm=0)
        a.ds_read("ds_read_b32", T[6], 1, T[6])
        a.wait(lgkm=0)
        a.valu("v_lshl_or_b32", T[6], T[6], "3", T[5])
        a.valu("v_mov_b32", T[5], "0")
        for j in range(8):
            a.valu("v_readlane_b32", "s55", T[6], str(j), flags={'readlane': 1})
            a.valu("v_cmp_gt_u32", "vcc", "s55", T[6])
            a.valu("v_addc_co_u32", T[5], "vcc", "0", T[5], "vcc", sw=[106, 107])
        a.salu(f"s_sub_u32 s55, 11, s{S_W}")
        a.salu(f"s_cmp_lt_u32 s{S_W}, 4")
        a.salu(f"s_cselect_b32 s55, s{S_W}, s55")
        a.valu("v_cmp_eq_u32", "vcc", "s55", T[5])
        a.salu(f"s_ff1_i32_b64 s{S_T}, vcc")
    a.salu("s_mul_i32 s42, s2, 200")
    a.salu(f"s_mul_i32 s43, s{S_T}, 25")
    a.salu("s_add_u32 s42, s42, s43")
    a.salu("s_lshl_b32 s46, s42, 7")
    a.salu(f"s_sub_u32 s55, s{S_T}, s{S_W}")
    a.salu("s_lshl_b32 s55, s55, 13")
    for ks in range(4):
        a.valu("v_add_u32", T[5], "s55", VA[ks])
        a.ds_read("ds_read_b128", XT[ks], 4, T[5])
    a.label("M_NOASSIGN")
    a.salu(f"s_and_b32 s55, s{S_T}, 3")
    a.salu("s_lshl_b32 s55, s55, 4")
    a.salu("s_add_u32 s55, s55, 15")
    a.valu("v_readlane_b32", "s51", T[3], "s55", flags={'readlane': 1})
    a.valu("v_readlane_b32", "s56", T[4], "s55", flags={'readlane': 1})
    a.salu(f"s_cmp_ge_u32 s{S_T}, 4")
    a.salu("s_cselect_b32 s51, s56, s51")
    a.salu("s_add_u32 s50, s51, 31")
    a.salu("s_and_b32 s50, s50, 0xffffffe0")
    a.salu(f"s_mul_i32 s49, s{S_T}, {TC}")
    a.wait(lgkm=0)
    for i, p_, K in recs():
        lab = f"M_BS_{i}"
        mask(i, lab)
        a.ds_read("ds_read_b32", BS + i, 1, BS + i, off=BASE - CNT)
        a.label(lab)
    a.salu("s_mov_b64 exec, -1")

    def place(pos, w0, w1, dl):
        a.valu("v_lshl_add_u32", T[4], pos, "1", "s52")
        a.ds_write("ds_write_b16", T[4], w0)
        a.valu("v_lshl_add_u32", T[6], pos, "2", "s54")
        a.ds_write("ds_write_b32", T[6], w1)

    a.valu("v_and_b32", T[3], "63", TID)
    a.salu("s_sub_u32 s55, s50, s51")
    a.salu("s_add_u32 s56, s49, s51")
    a.valu("v_cmp_gt_u32", "vcc", "s55", T[3])
    a.valu("v_add_u32", T[3], "s56", T[3])
    a.valu("v_mov_b32", T[0], "0")
    a.valu("v_mov_b32", T[1], "31")
    a.salu("s_mov_b64 exec, vcc")
    place(T[3], T[0], T[1], T[1])
    a.salu("s_mov_b64 exec, -1")
    a.wait(lgkm=0)
    for i, p_, K in recs():
        lab = f"M_PL_{i}"
        mask(i, lab)
        a.valu("v_add_u32", T[3], BS + i, RANK + i)
        place(T[3], REC + 2 * i, REC + 2 * i + 1, T[5])
        a.label(lab)
    a.salu("s_mov_b64 exec, -1")
    a.salu(f"s_lshr_b32 s{S_N}, s50, 5")
    a.salu(f"s_mov_b32 s{S_I}, 0")
    a.valu("v_and_b32", T[1], "63", TID)
    a.salu("s_lshl_b32 s55, s49, 1")
    a.salu("s_add_u32 s56, s55, s52")
    a.valu("v_lshrrev_b32", T[0], "3", T[1])
    a.valu("v_lshl_add_u32", VSRC, T[0], "3", "s56")
    a.salu("s_lshl_b32 s56, s49, 2")
    a.salu("s_add_u32 s56, s56, s54")
    def pi_of(dst, p):
        a.valu("v_and_b32", dst, "3", p)
        a.valu("v_lshrrev_b32", T[5], "1", p)
        a.valu("v_and_or_b32", dst, T[5], "12", dst)
        a.valu("v_lshlrev_b32", T[5], "2", p)
        a.valu("v_and_or_b32", dst, T[5], "16", dst)
    a.valu("v_lshrrev_b32", T[0], "1", T[1])
    pi_of(T[2], T[0])
    a.valu("v_lshl_add_u32", VEO, T[2], "2", "s56")
    a.valu("v_and_b32", T[0], "31", T[1])
    pi_of(T[2], T[0])
    a.valu("v_lshl_add_u32", VEM, T[2], "2", "s56")
    a.wait(lgkm=0)
    a.barrier()
    stamp(3)
    a.ds_read("ds_read_b64", PS, 2, VSRC)
    a.ds_read("ds_read_b32", PE, 1, VEO)
    a.ds_read("ds_read_b64", SD, 2, VSRC, off=64)
    a.ds_read("ds_read_b32", SD + 2, 1, VEO, off=128)
    a.ds_read("ds_read_b32", DM, 1, VEM)
    a.valu("v_and_b32", T[0], "31", TID)
    a.valu("v_lshl_add_u32", T[0], T[0], "6", VTB)
    a.ds_read("ds_read_b128", IDB[0], 4, T[0])
    a.ds_read("ds_read_b128", IDB[1], 4, T[0], off=16)
    a.wait(lgkm=0)
    a.salu(f"s_cmp_eq_u32 s{S_N}, 0")
    a.salu("s_cbranch_scc1 M_PRE_DONE")
    dma_issue(a, PS, PE)
    a.salu(f"s_cmp_eq_u32 s{S_N}, 1")
    a.salu("s_cbranch_scc1 M_PRE_DONE")
    a.salu(f"s_xor_b32 s{S_MX}, s{S_MX}, 4096")
    a.salu(f"s_xor_b32 s{S_ME}, s{S_ME}, 1024")
    dma_issue(a, SD, SD + 2)
    a.salu(f"s_xor_b32 s{S_MX}, s{S_MX}, 4096")
    a.salu(f"s_xor_b32 s{S_ME}, s{S_ME}, 1024")
    a.label("M_PRE_DONE")
    a.valu("v_add_u32", VSRC, "128", VSRC)
    a.valu("v_add_u32", VEO, "256", VEO)
    a.valu("v_add_u32", VEM, "128", VEM)
    a.salu(f"s_and_b32 s38, s{S_ROUND}, 0x7fffffff")
    a.salu("s_cmp_eq_u32 s38, 0")
    a.salu("s_cbranch_scc0 M_NOAT")
    for c, o in ((0, GG), (1, HH)):
        for ks in range(4):
            a.mfma32(o, XT[ks], WA[(ks, c)], None if ks == 0 else o)
    for c, o in ((0, GG), (1, HH)):
        if FOLD:
            for k in range(16):
                a.valu("v_mul_f32", o + k, "s62", o + k)
        for s in range(2):
            for k in range(4):
                a.valu("v_cvt_pk_bf16_f32", AT[(s, c)] + k, o + 8 * s + 2 * k, o + 8 * s + 2 * k + 1)
    for r in range(104, 168):
        a.valu("v_mov_b32", r, "0")
    a.label("M_NOAT")
    a.salu(f"s_lshl_b32 s57, s{S_W}, 2")
    a.salu(f"s_add_u32 s57, s57, {PROG}")
    a.valu("v_mov_b32", VPROG, "s57")
    a.fence()
    a.salu(f"s_cmp_ge_u32 s{S_I}, s{S_N}")
    a.salu("s_cbranch_scc1 M_LOOP_END")

    def operand_reads(tag):
        a.salu(f"s_add_u32 s39, s38, 1")
        a.salu(f"s_cmp_lt_u32 s39, s{S_N}")
        a.salu(f"s_cbranch_scc1 M_W5{tag}")
        a.wait(vm=0)
        a.salu(f"s_branch M_W0{tag}")
        a.label(f"M_W5{tag}")
        a.wait(vm=5)
        a.label(f"M_W0{tag}")
        a.valu("v_and_b32", T[0], "31", DM)
        a.valu("v_lshl_add_u32", TOH, T[0], "6", VTB)
        a.ds_read("ds_read_b128", OH[0], 4, TOH)
        a.ds_read("ds_read_b128", OH[1], 4, TOH, off=16)
        for ks in range(4):
            a.ds_read("ds_read_b128", X[ks], 4, VA[ks])
        a.ds_read("ds_read_b128", EOP, 4, VE)
        a.ds_read("ds_read_b64", PS, 2, VSRC)
        a.ds_read("ds_read_b32", PE, 1, VEO)
        a.ds_read("ds_read_b32", DM, 1, VEM)
        if BAL:
            a.salu(f"s_sub_u32 s57, s{S_N}, s38")
            a.valu("v_mov_b32", T[1], "s57")
            a.valu("v_xor_b32", T[2], "16", VPROG)
            a.ds_write("ds_write_b32", VPROG, T[1])
            a.ds_read("ds_read_b32", T[5], 1, T[2])
        for ks in range(4):
            a.valu("v_xor_b32", VA[ks], "0x1000", VA[ks])
        a.valu("v_xor_b32", VE, "0x400", VE)
        a.valu("v_add_u32", VSRC, "64", VSRC)
        a.valu("v_add_u32", VEO, "0x80", VEO)
        a.valu("v_add_u32", VEM, "0x80", VEM)

    VWV = TOH
    def wv_reads(c):
        a.valu("v_and_b32", T[6], "63", TID)
        a.valu("v_lshlrev_b32", T[6], "4", T[6])
        a.valu("v_add_u32", T[6], str(WVL), T[6])
        for ks in range(4):
            a.ds_read("ds_read_b128", WVB[ks], 4, T[6], off=(ks * 2 + c) * 1024)

    def g_mfmas(c):
        g = GG if c == 0 else GB
        l = [lambda ks=ks: a.mfma32(g, X[ks], WB[(ks, c)], None if ks == 0 else g) for ks in range(4)]
        l.append(lambda: a.mfma32(g, EOP, WC[c], g))
        l.append(lambda: a.mfma32(g, OH[0], AT[(0, c)], g))
        l.append(lambda: a.mfma32(g, OH[1], AT[(1, c)], g))
        return l
    def h_mfmas():
        return [lambda ks=ks: a.mfma32(HH, X[ks], WVB[ks], None if ks == 0 else HH) for ks in range(4)]
    def seg_mfmas(c):
        g = GG if c == 0 else GB
        return [lambda: a.mfma32(DEN[c], SD, g, DEN[c]), lambda: a.mfma32(DEN[c], SD + 4, g + 4, DEN[c]),
                lambda: a.mfma32(NUM[c], SD, HH, NUM[c]), lambda: a.mfma32(NUM[c], SD + 4, HH + 4, NUM[c])]
    def valu_ops(c):
        g = GG if c == 0 else GB
        v = []
        if not FOLD:
            v += [lambda k=k: a.valu("v_mul_f32", g + k, "s62", g + k) for k in range(16)]
        v += [lambda k=k: a.valu("v_exp_f32", g + k, g + k, trans=True) for k in range(16)]
        v += [lambda k=k: a.valu("v_add_f32", g + k, "1.0", g + k) for k in range(16)]
        v += [lambda k=k: a.valu("v_rcp_f32", g + k, g + k, trans=True) for k in range(16)]
        v += [lambda k=k: a.valu("v_mul_f32", HH + k, g + k, HH + k) for k in range(16)]
        v += [lambda k=k: a.valu("v_cvt_pk_bf16_f32", g + k, g + 2 * k, g + 2 * k + 1) for k in range(8)]
        v += [lambda k=k: a.valu("v_cvt_pk_bf16_f32", HH + k, HH + 2 * k, HH + 2 * k + 1) for k in range(8)]
        return v
    if NOCOMP:
        _vo = valu_ops
        valu_ops = lambda c: [(lambda: None)] * len(_vo(c))
        g_mfmas = lambda c: [(lambda: None)] * 7
        h_mfmas = lambda: [(lambda: None)] * 4
        seg_mfmas = lambda c: [(lambda: None)] * 4
    def run_stage(v, events):
        for i in range(len(v) + 1):
            for e in events.get(i, []):
                e()
            if i < len(v):
                v[i]()

    a.salu(f"s_mov_b32 s38, s{S_I}")
    operand_reads("P")
    wv_reads(0)
    for k in range(8):
        a.valu("v_mov_b32", SD + k, "0")
        a.valu("v_mov_b32", GB + k, "0")
        a.valu("v_mov_b32", HH + k, "0")
    a.wait(lgkm=0)
    for m in g_mfmas(0):
        m()
    a.fence()

    a.label("M_GROUP")
    def prio():
        if BAL:
            a.valu("v_readfirstlane_b32", "s58", T[5], flags={'readlane': 1})
            a.salu("s_cmp_ge_u32 s57, s58")
            a.salu("s_cbranch_scc1 M_PHI")
            a.salu("s_setprio 0")
            a.salu("s_branch M_PDONE")
            a.label("M_PHI")
            a.salu("s_setprio 1")
            a.label("M_PDONE")
    def dma_block():
        a.salu(f"s_add_u32 s38, s{S_I}, 2")
        a.salu(f"s_cmp_lt_u32 s38, s{S_N}")
        a.salu("s_cbranch_scc0 M_NODMA")
        dma_issue(a, PS, PE)
        a.salu("s_branch M_DMAD")
        a.label("M_NODMA")
        a.salu(f"s_cmp_eq_u32 s38, s{S_N}")
        a.salu("s_cbranch_scc0 M_DMAD")
        a.salu(f"s_cmp_eq_u32 s{S_MORE}, 0")
        a.salu("s_cbranch_scc0 M_DMAD")
        a.valu("v_bfe_u32", T[6], TID, "3", "3")
        xtile_dma(T[6])
        a.label("M_DMAD")
        a.salu(f"s_xor_b32 s{S_MX}, s{S_MX}, 4096")
        a.salu(f"s_xor_b32 s{S_ME}, s{S_ME}, 1024")
    def cvt_s():
        for k in range(8):
            a.valu("v_cvt_pk_bf16_f32", SD + k, HH + 2 * k, HH + 2 * k + 1)
    def next_ops():
        a.salu(f"s_add_u32 s38, s{S_I}, 1")
        a.salu(f"s_cmp_lt_u32 s38, s{S_N}")
        a.salu("s_cbranch_scc0 M_NOPF")
        operand_reads("L")
        a.label("M_NOPF")
    ev = {}
    def at(pos, f):
        if FOLD:
            pos = pos * 80 // 96
        ev.setdefault(pos, []).append(f)
    at(0, prio)
    sg = seg_mfmas(1)
    for k in range(4):
        at(4 * k, sg[k])
    at(16, lambda: a.mfma32(HH, OH[0], IDB[0], None))
    at(20, lambda: a.mfma32(HH, OH[1], IDB[1], HH))
    at(24, dma_block)
    at(36, cvt_s)
    hm = h_mfmas()
    for k in range(4):
        at(38 + 4 * k, hm[k])
    at(52, lambda: wv_reads(1))
    gm = g_mfmas(1)
    for k in range(7):
        at(54 + 5 * k, gm[k])
    run_stage(valu_ops(0), ev)
    ev = {}
    sg = seg_mfmas(0)
    for k in range(4):
        at(3 * k, sg[k])
    at(12, lambda: a.wait(lgkm=0))
    hm = h_mfmas()
    for k in range(4):
        at(12 + 4 * k, hm[k])
    at(26, next_ops)
    at(26, lambda: wv_reads(0))
    at(46, lambda: a.wait(lgkm=0))
    gm = g_mfmas(0)
    for k in range(7):
        at(46 + 5 * k, gm[k])
    run_stage(valu_ops(1), ev)
    a.salu(f"s_add_u32 s{S_I}, s{S_I}, 1")
    a.salu(f"s_cmp_lt_u32 s{S_I}, s{S_N}")
    a.salu("s_cbranch_scc1 M_GROUP")
    for m in seg_mfmas(1):
        m()

    a.label("M_LOOP_END")
    a.fence()
    if BAL:
        a.valu("v_mov_b32", T[1], "0")
        a.ds_write("ds_write_b32", VPROG, T[1])
        a.salu("s_setprio 0")
    stamp(4)
    a.salu(f"s_cmp_eq_u32 s{S_MORE}, 0")
    a.salu("s_cbranch_scc1 M_EPI")
    a.wait(vm=0, lgkm=0)
    a.barrier()
    a.valu("v_mov_b32", T[4], "0")
    a.valu("v_lshlrev_b32", T[5], "2", TID)
    a.valu("v_add_u32", T[5], str(CNT), T[5])
    a.valu("v_cmp_gt_u32", "vcc", str(NZERO), TID)
    a.salu("s_and_saveexec_b64 s[40:41], vcc")
    a.ds_write("ds_write_b32", T[5], T[4])
    a.salu("s_mov_b64 exec, s[40:41]")
    a.salu(f"s_add_u32 s{S_ROUND}, s{S_ROUND}, 1")
    a.salu(f"s_add_u32 s{S_DONE}, s{S_DONE}, s{S_STEP}")
    a.salu(f"s_and_b32 s38, s{S_N}, 1")
    a.salu("s_cmp_eq_u32 s38, 0")
    a.salu("s_cbranch_scc1 M_PAR_OK")
    for ks in range(4):
        a.valu("v_xor_b32", VA[ks], "0x1000", VA[ks])
    a.valu("v_xor_b32", VE, "0x400", VE)
    a.salu(f"s_xor_b32 s{S_MX}, s{S_MX}, 4096")
    a.salu(f"s_xor_b32 s{S_ME}, s{S_ME}, 1024")
    a.label("M_PAR_OK")
    a.wait(lgkm=0)
    a.fence()
    a.salu("s_branch M_ROUND")

    a.label("M_OVERFLOW")
    a.wait(vm=0, lgkm=0)
    a.barrier()
    a.valu("v_mov_b32", T[4], "0")
    a.valu("v_lshlrev_b32", T[5], "2", TID)
    a.valu("v_add_u32", T[5], str(CNT), T[5])
    a.valu("v_cmp_gt_u32", "vcc", str(NZERO), TID)
    a.salu("s_and_saveexec_b64 s[40:41], vcc")
    a.ds_write("ds_write_b32", T[5], T[4])
    a.salu("s_mov_b64 exec, s[40:41]")
    a.salu(f"s_mov_b32 s{S_STEP}, 4")
    a.salu(f"s_cmp_eq_u32 s{S_ROUND}, 0")
    a.salu("s_cbranch_scc0 M_OV2")
    a.salu(f"s_mov_b32 s{S_ROUND}, 0x80000000")
    a.label("M_OV2")
    a.wait(lgkm=0)
    a.fence()
    a.salu("s_branch M_ROUND")
    a.label("M_EPI")
    WU = {(ks, c): 40 + (ks * 2 + c) * 4 for ks in range(4) for c in range(2)}
    XE = [72, 76, 80, 84]
    XR = [88, 92, 96, 100]
    a.salu(f"s_cmp_ge_u32 s{S_N}, 2")
    a.salu("s_cbranch_scc1 M_EPI_HAVE")
    a.valu("v_bfe_u32", T[6], TID, "3", "3")
    xtile_dma(T[6])
    a.label("M_EPI_HAVE")
    LANE2, VM2, VHH2 = T[0], T[1], T[2]
    a.valu("v_and_b32", LANE2, "63", TID)
    a.valu("v_and_b32", VM2, "31", LANE2)
    a.valu("v_lshrrev_b32", VHH2, "5", LANE2)
    a.valu("v_lshlrev_b32", T[3], "4", LANE2)
    a.valu("v_add_u32", T[4], str(WUL), T[3])
    for ks in range(4):
        for c in range(2):
            a.ds_read("ds_read_b128", WU[(ks, c)], 4, T[4], off=(ks * 2 + c) * 1024)
    a.valu("v_lshrrev_b32", T[4], "3", LANE2)
    a.valu("v_and_b32", T[5], "3", T[4])
    a.valu("v_and_b32", T[6], "4", T[4])
    a.valu("v_lshl_add_u32", T[6], T[5], "3", T[6])
    a.valu("v_and_b32", T[4], "7", LANE2)
    a.valu("v_xor_b32", T[4], T[4], T[5])
    a.valu("v_lshlrev_b32", T[4], "4", T[4])
    a.valu("v_lshl_add_u32", T[4], T[6], "7", T[4])
    a.valu("v_add_u32", T[4], f"s{S_MX}", T[4])
    a.valu("v_xor_b32", T[5], "64", T[4])
    for c in range(2):
        for r in range(16):
            a.valu("v_add_f32", DEN[c] + r, "0x358637bd", DEN[c] + r)
    for c in range(2):
        for r in range(16):
            a.valu("v_rcp_f32", DEN[c] + r, DEN[c] + r, trans=True)
    for c in range(2):
        for r in range(16):
            a.valu("v_mul_f32", NUM[c] + r, NUM[c] + r, DEN[c] + r)
    a.wait(vm=0)
    for ks in range(4):
        a.ds_read("ds_read_b128", XE[ks], 4, VA[ks])
    a.ds_read("ds_read_b128", XR[0], 4, T[4])
    a.ds_read("ds_read_b128", XR[1], 4, T[4], off=128)
    a.ds_read("ds_read_b128", XR[2], 4, T[5], off=256)
    a.ds_read("ds_read_b128", XR[3], 4, T[5], off=384)
    a.wait(lgkm=0)
    for c in range(2):
        for ks in range(4):
            a.mfma32(NUM[c], XE[ks], WU[(ks, c)], NUM[c])
    a.salu(f"s_lshl_b32 s38, s{S_W}, 13")
    a.valu("v_lshlrev_b32", T[4], "10", VHH2)
    a.valu("v_lshl_add_u32", T[4], VM2, "2", T[4])
    a.valu("v_add_u32", T[4], "s38", T[4])
    a.valu("v_lshlrev_b32", T[5], "5", LANE2)
    a.valu("v_add_u32", T[5], "s38", T[5])
    for c in range(2):
        for r in range(16):
            if (r >> 2) == 3 and (r & 3) >= 1:
                continue
            a.valu("v_max_f32", NUM[c] + r, "0", NUM[c] + r)
            a.ds_write("ds_write_b32", T[4], NUM[c] + r, off=(8 * (r >> 2) + (r & 3)) * 256 + c * 128)
    a.wait(lgkm=0)
    ZR = [104, 112, 120, 128]
    for i in range(4):
        a.ds_read("ds_read_b128", ZR[i], 4, T[5], off=i * 2048)
        a.ds_read("ds_read_b128", ZR[i] + 4, 4, T[5], off=i * 2048 + 16)
    a.valu("v_mov_b32", T[6], "0x40000000")
    a.valu("v_cmp_gt_u32", "vcc", "8", LANE2)
    a.valu("v_cndmask_b32", T[6], T[6], T[3], "vcc")
    a.wait(vm=0, lgkm=0)
    for i in range(4):
        for k in range(4):
            a.valu("v_lshlrev_b32", T[0], "16", XR[i] + k)
            a.valu("v_and_b32", T[1], "0xffff0000", XR[i] + k)
            a.valu("v_add_f32", T[0], T[0], ZR[i] + 2 * k)
            a.valu("v_add_f32", T[1], T[1], ZR[i] + 2 * k + 1)
            a.valu("v_cvt_pk_bf16_f32", XR[i] + k, T[0], T[1])
        a.bstore("buffer_store_dwordx4", XR[i], 4, T[3] if i < 3 else T[6], SRD_O, "s46", i * 1024)
    if INSTR:
        stamp(5)
        a.salu(f"s_cmp_lg_u32 s2, {INSTR}")
        a.salu("s_cbranch_scc1 M_END")
        a.salu("s_load_dwordx2 s[64:65], s[0:1], 80")
        a.wait(lgkm=0)
        srd(a, 64, 64, 256)
        a.salu(f"s_lshl_b32 s70, s{S_W}, 5")
        a.valu("v_mov_b32", T[0], "0")
        for k, sreg in enumerate((44, 45, 100, 101, 60, 61)):
            a.salu(f"s_sub_u32 s71, s{sreg}, s44")
            if k == 0:
                a.salu(f"s_mov_b32 s71, s{S_N}")
            a.valu("v_mov_b32", T[1], "s71")
            a.bstore("buffer_store_dword", T[1], 1, T[0], 64, "s70", 4 * k)
    a.label("M_END")
    a.salu("s_endpgm")
    return a.text()


def kd(name, vg, sg):
    return f""".amdhsa_kernel {name}
  .amdhsa_next_free_vgpr {vg}
  .amdhsa_next_free_sgpr {sg}
  .amdhsa_accum_offset {(vg + 3) // 4 * 4}
  .amdhsa_group_segment_fixed_size 0
  .amdhsa_kernarg_size 96
  .amdhsa_user_sgpr_count 2
  .amdhsa_user_sgpr_kernarg_segment_ptr 1
  .amdhsa_system_sgpr_workgroup_id_x 1
.end_amdhsa_kernel
"""

def main():
    out = HEADER.format(mainlds=MAINLDS)
    if PF:
        out = out.replace("grid=(255,1,1)", "grid=(505,1,1)")
    out += gen_part()
    out += gen_main()
    out += '.section .rodata,"a"\n.p2align 6\n'
    out += kd("gp_part_kernel", 64, 64)
    out += ".p2align 6\n"
    out += kd("gp_main_kernel", 256, 102)
    path = sys.argv[1] if len(sys.argv) > 1 else "gather_scatter__edge_featured_mpnn_gatedgcn__graph.s"
    open(path, "w").write(out)
    print("wrote", path, len(out), "bytes; main lds", MAINLDS)

if __name__ == "__main__":
    main()
```

```python
import sys, os
sys.path.insert(0, os.path.dirname(__file__))
from asmlib import Asm, vr, sr, R

N = 50000; E = 800000
G = 250; CH = 3200; NB = 250; NPB = 200
WS_REC = 0
WS_TAB = 6400000
WS_WT = 6668288
WS_SIZE = 8 << 20
INSTR = int(os.environ.get("INSTR", "0"))
NOCOMP = int(os.environ.get("NOCOMP", "0"))
NOMEM = int(os.environ.get("NOMEM", "0"))
PRIO = int(os.environ.get("PRIO", "1"))
ENT = int(os.environ.get("ENT", "0"))
BAL = int(os.environ.get("BAL", "1"))
PK = int(os.environ.get("PK", "0"))
K1ST = os.environ.get("K1ST", "")
K1DIRECT = int(os.environ.get("K1DIRECT", "0"))
PF = int(os.environ.get("PF", "0"))
FOLD = int(os.environ.get("FOLD", "1"))

HEADER = """; Kernarg layout for this problem (96 bytes, ptrs only, base s[0:1]):
; @launch kernel=gp_part_kernel grid=(255,1,1) block=(640,1,1) lds=27648
; @launch kernel=gp_main_kernel grid=(256,1,1) block=(512,1,1) lds={mainlds}
.amdgcn_target "amdgcn-amd-amdhsa--gfx950"
.text
"""

def srd(a, d, base, nbytes):
    a.salu(f"s_mov_b32 s{d}, s{base}")
    a.salu(f"s_and_b32 s{d+1}, s{base+1}, 0xffff")
    a.salu(f"s_mov_b32 s{d+2}, {nbytes}")
    a.salu(f"s_mov_b32 s{d+3}, 0x00020000")


def gen_part():
    a = Asm()
    a.raw(".globl gp_part_kernel\n.p2align 8\n.type gp_part_kernel,@function\ngp_part_kernel:")
    a.salu("s_cmp_gt_u32 s2, 254")
    a.salu("s_cbranch_scc1 P_PF" if PF else "s_cbranch_scc1 P_END")
    a.salu("s_load_dwordx4 s[4:7], s[0:1], 16")
    a.salu("s_load_dwordx2 s[8:9], s[0:1], 88")
    a.salu("s_cmp_ge_u32 s2, 250")
    a.salu("s_cbranch_scc1 P_WEIGHTS")
    a.valu("v_lshlrev_b32", 1, "2", 0)
    a.valu("v_mov_b32", 2, "0")
    a.valu("v_mov_b32", 4, "1")
    a.valu("v_cmp_gt_u32", "vcc", "256", 0)
    a.salu("s_and_saveexec_b64 s[30:31], vcc")
    a.ds_write("ds_write_b32", 1, 2)
    a.salu("s_mov_b64 exec, s[30:31]")
    a.wait(lgkm=0)
    srd(a, 12, 4, E * 4)
    srd(a, 16, 6, E * 4)
    srd(a, 20, 8, WS_SIZE)
    a.salu("s_mul_i32 s3, s2, 12800")
    a.valu("v_add_u32", 3, "s3", 1)
    a.salu("s_mov_b32 s40, 5120")
    a.salu("s_mov_b32 s41, 10240")
    locs = [("0", 0), ("0", 2560), ("s40", 0), ("s40", 2560), ("s41", 0)]
    for k in range(5):
        a.bload("buffer_load_dword", 10 + k, 1, 3, 16, locs[k][0], locs[k][1])
    for k in range(5):
        a.bload("buffer_load_dword", 15 + k, 1, 3, 12, locs[k][0], locs[k][1])
    a.salu("s_mov_b32 s42, 21913099")
    a.valu("v_lshlrev_b32", 9, "3", 3)
    a.barrier()
    a.wait(vm=5)
    for k in range(5):
        d = 10 + k
        a.valu("v_mul_hi_u32", 5, d, "s42")
        a.valu("v_mul_u32_u24", 6, "196", 5)
        a.valu("v_sub_u32", 6, d, 6)
        a.valu("v_lshlrev_b32", 20 + k, "2", 5)
        a.ds_add_rtn(25 + k, 20 + k, 4)
        a.valu("v_lshl_add_u32", 7, 6, "1", "1")
        a.valu("v_mul_u32_u24", 7, "1338", 7)
        a.valu("v_lshrrev_b32", 7, "16", 7)
        a.valu("v_mul_u32_u24", 8, "49", 7)
        a.valu("v_lshrrev_b32", 8, "1", 8)
        a.valu("v_sub_u32", 8, 6, 8)
        a.valu("v_lshlrev_b32", 10 + k, "16", 7)
        a.valu("v_add3_u32", 31 + 2 * k, 9, 8, "s%d" % (44 + k)) if False else None
        a.valu("v_add_u32", 31 + 2 * k, str(k * 20480), 9)
        a.valu("v_or_b32", 31 + 2 * k, 31 + 2 * k, 8)
    a.wait(vm=0)
    for k in range(5):
        a.valu("v_or_b32", 30 + 2 * k, 10 + k, 15 + k)
    a.wait(lgkm=0)
    a.barrier()
    a.valu("v_cmp_gt_u32", "vcc", "64", 0)
    a.salu("s_and_saveexec_b64 s[30:31], vcc")
    a.salu("s_cbranch_execz P_SCAN_DONE")
    a.valu("v_lshlrev_b32", 40, "4", 0)
    a.ds_read("ds_read_b128", 44, 4, 40)
    a.wait(lgkm=0)
    a.valu("v_add_u32", 48, 44, 45)
    a.valu("v_add_u32", 49, 48, 46)
    a.valu("v_add_u32", 50, 49, 47)
    a.valu("v_mov_b32", 51, 50)
    for sh in (1, 2, 4, 8):
        a.valu("v_add_u32_dpp", 51, 51, 51, mods=f"row_shr:{sh} row_mask:0xf bank_mask:0xf bound_ctrl:0", flags={'dpp': 1})
    a.valu("v_add_u32_dpp", 51, 51, 51, mods="row_bcast:15 row_mask:0xa bank_mask:0xf", flags={'dpp': 1})
    a.valu("v_add_u32_dpp", 51, 51, 51, mods="row_bcast:31 row_mask:0xc bank_mask:0xf", flags={'dpp': 1})
    a.valu("v_sub_u32", 52, 51, 50)
    a.valu("v_add_u32", 53, 52, 44)
    a.valu("v_add_u32", 54, 52, 48)
    a.valu("v_add_u32", 55, 52, 49)
    a.ds_write("ds_write_b128", 40, 52, 4, off=1024)
    a.salu("s_lshl_b32 s43, s2, 2")
    a.salu(f"s_add_u32 s43, s43, {WS_TAB}")
    a.valu("v_lshlrev_b32", 41, "12", 0)
    for j in range(4):
        a.bstore("buffer_store_dword", 52 + j, 1, 41, 20, "s43", j * 1024)
    a.valu("v_cmp_eq_u32", "vcc", "63", 0)
    a.salu("s_and_b64 exec, exec, vcc")
    a.salu("s_add_u32 s43, s43, 4096")
    a.bstore("buffer_store_dword", 51, 1, 41, 20, "s43", 0)
    a.wait(lgkm=0)
    a.label("P_SCAN_DONE")
    a.salu("s_mov_b64 exec, s[30:31]")
    a.barrier()
    for k in range(5):
        a.ds_read("ds_read_b32", 44 + k, 1, 20 + k, off=1024)
    a.wait(lgkm=0)
    if K1DIRECT:
        a.salu("s_mul_i32 s44, s2, 25600")
        for k in range(5):
            a.valu("v_add_u32", 5 + k, 44 + k, 25 + k)
            a.valu("v_lshlrev_b32", 5 + k, "3", 5 + k)
            a.bstore("buffer_store_dwordx2", 30 + 2 * k, 2, 5 + k, 20, "s44")
        a.salu("s_endpgm")
    for k in range(5):
        a.valu("v_add_u32", 5, 44 + k, 25 + k)
        a.valu("v_lshlrev_b32", 5, "3", 5)
        a.ds_write("ds_write_b64", 5, 30 + 2 * k, 2, off=2048)
    a.wait(lgkm=0)
    a.barrier()
    a.valu("v_lshlrev_b32", 5, "4", 0)
    a.salu("s_mul_i32 s44, s2, 25600")
    a.ds_read("ds_read_b128", 44, 4, 5, off=2048)
    a.ds_read("ds_read_b128", 48, 4, 5, off=2048 + 10240)
    a.valu("v_cmp_gt_u32", "vcc", "320", 0)
    a.salu("s_and_saveexec_b64 s[30:31], vcc")
    a.ds_read("ds_read_b128", 52, 4, 5, off=2048 + 20480)
    a.salu("s_mov_b64 exec, s[30:31]")
    a.salu("s_add_u32 s45, s44, 10240")
    a.salu("s_add_u32 s46, s44, 20480")
    a.wait(lgkm=2)
    a.bstore("buffer_store_dwordx4", 44, 4, 5, 20, "s44", extra=K1ST)
    a.wait(lgkm=1)
    a.bstore("buffer_store_dwordx4", 48, 4, 5, 20, "s45", extra=K1ST)
    a.wait(lgkm=0)
    a.salu("s_and_saveexec_b64 s[30:31], vcc")
    a.bstore("buffer_store_dwordx4", 52, 4, 5, 20, "s46", extra=K1ST)
    a.salu("s_endpgm")

    a.label("P_WEIGHTS")
    a.salu("s_sub_u32 s3, s2, 250")
    a.salu("s_lshl_b32 s40, s3, 13")
    a.salu(f"s_add_u32 s40, s40, {WS_WT}")
    a.salu("s_mov_b32 s41, 32")
    a.salu("s_cmp_eq_u32 s3, 1")
    a.salu("s_cselect_b32 s41, 40, s41")
    a.salu("s_cmp_eq_u32 s3, 2")
    a.salu("s_cselect_b32 s41, 64, s41")
    a.salu("s_cmp_eq_u32 s3, 3")
    a.salu("s_cselect_b32 s41, 56, s41")
    a.salu("s_cmp_eq_u32 s3, 4")
    a.salu("s_cselect_b32 s41, 48, s41")
    a.salu("s_movk_i32 s42, 0x2000")
    a.salu("s_cselect_b32 s42, 2048, s42")
    a.salu("s_load_dwordx2 s[12:13], s[0:1], s41")
    a.wait(lgkm=0)
    srd(a, 20, 8, WS_SIZE)
    srd(a, 28, 12, 0)
    a.salu("s_mov_b32 s30, s42")
    for j in range(7):
        a.valu("v_add_u32", 1, str(640 * j), 0)
        a.valu("v_lshlrev_b32", 2, "1", 1)
        a.bload("buffer_load_ushort", 10 + j, 1, 2, 28)
        a.valu("v_lshrrev_b32", 3, "10", 1)
        a.valu("v_bfe_u32", 4, 1, "5", "1")
        a.valu("v_lshl_add_u32", 3, 3, "1", 4)
        a.valu("v_bfe_u32", 4, 1, "9", "1")
        a.valu("v_lshl_add_u32", 3, 3, "1", 4)
        a.valu("v_and_b32", 4, "31", 1)
        a.valu("v_lshl_add_u32", 3, 3, "5", 4)
        a.valu("v_bfe_u32", 4, 1, "6", "3")
        a.valu("v_lshl_add_u32", 3, 3, "3", 4)
        a.valu("v_lshlrev_b32", 3, "1", 3)
        a.valu("v_mov_b32", 5, "0x40000000")
        a.valu("v_cmp_gt_u32", "vcc", "s42", 2)
        a.valu("v_cndmask_b32", 20 + j, 5, 3, "vcc")
    a.wait(vm=0)
    if FOLD:
        a.salu("s_mov_b32 s44, 1.0")
        a.salu("s_cmp_eq_u32 s3, 1")
        a.salu("s_cselect_b32 s44, 0xbfb8aa3b, s44")
        a.salu("s_cmp_eq_u32 s3, 4")
        a.salu("s_cselect_b32 s44, 0xbfb8aa3b, s44")
        for j in range(7):
            a.valu("v_lshlrev_b32", 10 + j, "16", 10 + j)
            a.valu("v_mul_f32", 10 + j, "s44", 10 + j)
            a.valu("v_cvt_pk_bf16_f32", 10 + j, 10 + j, 10 + j)
    for j in range(7):
        a.bstore("buffer_store_short", 10 + j, 1, 20 + j, 20, "s40")
    a.label("P_END")
    a.salu("s_endpgm")
    if PF:
        a.label("P_PF")
        a.salu("s_sub_u32 s3, s2, 255")
        a.salu("s_cmp_ge_u32 s3, 250")
        a.salu("s_cbranch_scc1 P_END")
        a.salu("s_load_dwordx4 s[4:7], s[0:1], 0")
        a.wait(lgkm=0)
        srd(a, 12, 4, N * 128)
        srd(a, 16, 6, E * 32)
        a.valu("v_lshlrev_b32", 1, "4", 0)
        a.salu("s_mul_i32 s20, s3, 102400")
        for j in range(10):
            a.bload("buffer_load_dwordx4", 4 + 4 * j, 4, 1, 16, "s20")
            a.salu("s_add_u32 s20, s20, 10240")
        a.salu("s_mul_i32 s20, s3, 25600")
        for j in range(3):
            a.bload("buffer_load_dwordx4", 44 + 4 * j, 4, 1, 12, "s20")
            a.salu("s_add_u32 s20, s20, 10240")
        a.wait(vm=0)
        a.salu("s_endpgm")
    return a.text()


CAP = 250 * 32 + 256
XSTG = 0
ESTG = 65536
SRC16 = 81920
DLS = SRC16 + CAP * 2
EOFF = DLS + CAP * 2
CNT = EOFF + CAP * 4
TC = CAP // 8
BASE = CNT + 512
PROG = CNT + 1024
FLAG = CNT + 1088
TBL = CNT + 1152
NZERO = 288
WUL = TBL + 2048
MAINLDS = WUL + 8192
WVL = DLS
WTMP = SRC16

TID = 0
T = list(range(2, 9))
VTB = 9
IDB = [10, 100]
SWZ = [14, 15, 1, 31]
EHALF = 16
VA = [17, 18, 19, 20]
VE, VPROG, VEM, VSRC, VEO = 21, 22, 23, 24, 25
PS, PE, DM, TOH = 26, 28, 29, 30
SD = 32
X = [40, 44, 48, 52]
EOP = 56
OH = [60, 64]
GG, HH = 68, 84
DEN = [104, 120]
NUM = [136, 152]
WB = {(ks, c): 168 + (ks * 2 + c) * 4 for ks in range(4) for c in range(2)}
GB = 200
WVB = [216, 220, 224, 228]
WC = [232, 236]
AT = {(s, c): 240 + (s * 2 + c) * 4 for s in range(2) for c in range(2)}
SRD_X, SRD_E, SRD_O, SRD_W = 12, 16, 20, 24
S_W, S_ROUND, S_MORE, S_C128 = 28, 29, 30, 31
S_I, S_N = 32, 33
S_MX, S_ME = 36, 37
S_M32 = 59
S_DONE, S_STEP = 34, 35
S_T = 48
PAIR = int(os.environ.get('PAIR', '1'))
SMASK = 66


def dma_issue(a, ps, pe):
    a.valu("v_mad_u32_u16", T[0], ps, f"s{S_C128}", SWZ[0])
    a.valu("v_mad_u32_u16", T[1], ps, f"s{S_C128}", SWZ[1], mods="op_sel:[1,0,0,0]")
    a.valu("v_mad_u32_u16", T[2], ps + 1, f"s{S_C128}", SWZ[2])
    a.valu("v_mad_u32_u16", T[3], ps + 1, f"s{S_C128}", SWZ[3], mods="op_sel:[1,0,0,0]")
    a.valu("v_and_or_b32", T[4], pe, f"s{S_M32}", EHALF)
    if NOMEM:
        for j in range(5):
            a.valu("v_and_b32", T[j], "0x3ff", T[j])
    for j in range(4):
        if j == 0:
            a.m0(f"s_mov_b32 m0, s{S_MX}")
        else:
            a.m0(f"s_add_u32 m0, s{S_MX}, {1024*j}")
        a.bload_lds(T[j], SRD_X)
    a.m0(f"s_mov_b32 m0, s{S_ME}")
    a.bload_lds(T[4], SRD_E, extra=" nt" if ENT else "")


def gen_main():
    a = Asm()
    def stamp(k):
        if INSTR:
            a.salu("s_memtime s[98:99]")
            a.wait(lgkm=0)
            a.salu(f"s_mov_b32 s{(44, 45, 100, 101, 60, 61)[k]}, s98")
    a.raw(".globl gp_main_kernel\n.p2align 8\n.type gp_main_kernel,@function\ngp_main_kernel:")
    a.salu("s_cmp_ge_u32 s2, 256")
    a.salu("s_cbranch_scc1 M_END")
    a.salu("s_and_b32 s3, s2, 7")
    a.salu("s_lshl_b32 s3, s3, 5")
    a.salu("s_lshr_b32 s2, s2, 3")
    a.salu("s_add_u32 s2, s2, s3")
    a.salu("s_load_dwordx2 s[10:11], s[0:1], 88")
    a.salu("s_load_dwordx4 s[4:7], s[0:1], 0")
    a.salu("s_load_dwordx2 s[8:9], s[0:1], 72")
    stamp(0)
    LANE, VQ, VM, VHH, VW, VR = 160, 161, 162, 163, 164, 165
    a.valu("v_and_b32", LANE, "63", TID)
    a.valu("v_lshrrev_b32", T[0], "6", TID)
    a.valu("v_readfirstlane_b32", f"s{S_W}", T[0], flags={'readlane': 1})
    a.valu("v_lshlrev_b32", VW, "4", LANE)
    a.valu("v_lshrrev_b32", VQ, "4", LANE)
    a.valu("v_lshrrev_b32", VR, "3", LANE)
    a.salu(f"s_mov_b32 s{S_ROUND}, 0")
    a.salu(f"s_mov_b32 s{S_DONE}, 0")
    a.salu(f"s_mov_b32 s{S_STEP}, 32")
    a.salu(f"s_lshl_b32 s{S_MX}, s{S_W}, 13")
    a.salu("s_mul_i32 s42, s2, 196")
    a.salu(f"s_mul_i32 s43, s{S_W}, 49")
    a.salu("s_lshr_b32 s43, s43, 1")
    a.salu("s_add_u32 s42, s42, s43")
    a.salu("s_lshl_b32 s46, s42, 7")
    a.valu("v_and_b32", T[2], "7", LANE)
    a.valu("v_and_b32", T[3], "1", VQ)
    a.valu("v_lshlrev_b32", T[3], "2", T[3])
    a.valu("v_xor_b32", T[3], T[2], T[3])
    a.valu("v_lshlrev_b32", SWZ[0], "4", T[3])
    for j in range(1, 4):
        a.valu("v_xor_b32", SWZ[j], str(16 * j), SWZ[0])
    a.wait(lgkm=0)
    srd(a, SRD_W, 10, WS_SIZE)
    srd(a, SRD_X, 4, N * 128)

    def xtile_dma(vr_):
        a.valu("v_and_b32", T[0], "2", vr_)
        a.valu("v_lshlrev_b32", T[0], "3", T[0])
        a.valu("v_and_b32", T[1], "1", vr_)
        a.valu("v_lshl_add_u32", T[0], T[1], "3", T[0])
        a.valu("v_lshrrev_b32", T[1], "2", vr_)
        a.valu("v_lshl_add_u32", T[0], T[1], "2", T[0])
        a.valu("v_lshlrev_b32", T[0], "7", T[0])
        for j in range(4):
            a.valu("v_add_u32", T[1 + j], T[0], SWZ[j])
        for j in range(4):
            a.salu(f"s_add_u32 s38, s46, {128 * j}")
            if j == 0:
                a.m0(f"s_mov_b32 m0, s{S_MX}")
            else:
                a.m0(f"s_add_u32 m0, s{S_MX}, {1024*j}")
            a.bload_lds(T[1 + j], SRD_X, "s38")

    REC = 40; RANK = 72; BS = 88
    REM = [32, 33, 34, 35]; ROF = [36, 37, 38, 39]
    a.label("M_ROUND")
    a.valu("v_lshrrev_b32", T[0], "3", TID)
    a.valu("v_lshlrev_b32", T[1], "2", T[0])
    a.salu("s_lshl_b32 s38, s2, 10")
    a.salu(f"s_add_u32 s38, s38, {WS_TAB}")
    for p_ in range(4):
        a.bload("buffer_load_dword", ROF[p_], 1, T[1], SRD_W, "s38", 256 * p_)
        a.bload("buffer_load_dword", REM[p_], 1, T[1], SRD_W, "s38", 1024 + 256 * p_)
    a.valu("v_lshrrev_b32", T[0], "3", TID)
    a.valu("v_and_b32", T[2], "7", TID)
    a.valu("v_lshlrev_b32", T[2], "1", T[2])
    a.valu("v_add_u32", T[6], f"s{S_DONE}", T[2])
    a.wait(vm=0)
    stamp(1)
    for p_ in range(4):
        a.valu("v_sub_u32", REM[p_], REM[p_], ROF[p_])
        if p_ == 3:
            a.valu("v_cmp_gt_u32", "vcc", str(250 - 192), T[0])
            a.valu("v_cndmask_b32", REM[p_], "0", REM[p_], "vcc")
        a.valu("v_subrev_u32", REM[p_], f"s{S_DONE}", REM[p_])
        if p_ == 0:
            a.valu("v_mov_b32", T[5], REM[p_])
        else:
            a.valu("v_max_i32", T[5], T[5], REM[p_])
        a.valu("v_min_i32", REM[p_], f"s{S_STEP}", REM[p_])
        a.valu("v_sub_u32", REM[p_], REM[p_], T[2])
        a.valu("v_add_u32", T[3], str(64 * p_), T[0])
        a.valu("v_mul_u32_u24", T[3], "3200", T[3])
        a.valu("v_add3_u32", T[3], T[3], ROF[p_], T[6])
        a.valu("v_lshlrev_b32", ROF[p_], "3", T[3])
    a.valu("v_cmp_lt_i32", "s[40:41]", f"s{S_STEP}", T[5])
    def recs():
        for p_ in range(4):
            for c_ in range(2):
                for h_ in range(2):
                    yield (p_ * 2 + c_) * 2 + h_, p_, 16 * c_ + h_
    for i, p_, K in recs():
        a.valu("v_cmp_lt_i32", f"s[{SMASK+2*i}:{SMASK+2*i+1}]", str(K), REM[p_])
    def mask(i, skip):
        a.salu(f"s_mov_b64 exec, s[{SMASK+2*i}:{SMASK+2*i+1}]")
        a.salu(f"s_cbranch_execz {skip}")
    for p_ in range(4):
        for c_ in range(2):
            lab = f"M_LD_{p_}{c_}"
            mask((p_ * 2 + c_) * 2, lab)
            a.bload("buffer_load_dwordx4", REC + (p_ * 2 + c_) * 4, 4, ROF[p_], SRD_W, "0", 128 * c_)
            a.label(lab)
    a.salu("s_mov_b64 exec, -1")
    a.salu(f"s_cmp_eq_u32 s{S_ROUND}, 0")
    a.salu("s_cbranch_scc0 M_NOSETUP")
    for kk in range(5):
        a.salu(f"s_add_u32 s39, s{S_W}, {8 * kk}")
        if kk == 4:
            a.salu("s_cmp_ge_u32 s39, 34")
            a.salu("s_cbranch_scc1 M_WL_SKIP")
        if kk == 3:
            a.salu("s_lshl_b32 s38, s39, 10")
            a.m0(f"s_add_u32 m0, s38, {WUL - 24576}")
        elif kk == 2:
            a.salu("s_lshl_b32 s38, s39, 10")
            a.m0(f"s_add_u32 m0, s38, {WVL - 16384}")
        else:
            a.salu(f"s_sub_u32 s38, s39, {8 if kk == 4 else 0}")
            a.salu("s_lshr_b32 s47, s38, 2")
            a.salu("s_lshl_b32 s47, s47, 13")
            a.salu("s_and_b32 s38, s38, 3")
            a.salu("s_lshl_b32 s38, s38, 10")
            a.salu("s_add_u32 s38, s38, s47")
            a.m0("s_add_u32 m0, s38, 4096")
        a.salu("s_lshl_b32 s39, s39, 10")
        a.salu(f"s_add_u32 s39, s39, {WS_WT}")
        a.bload_lds(VW, SRD_W, "s39")
    a.label("M_WL_SKIP")
    xtile_dma(VR)
    srd(a, SRD_E, 6, E * 32)
    srd(a, SRD_O, 8, N * 128)
    a.valu("v_and_b32", VM, "31", LANE)
    a.valu("v_lshrrev_b32", VHH, "5", LANE)
    a.valu("v_xor_b32", T[2], LANE, VQ)
    a.valu("v_and_b32", T[2], "1", T[2])
    a.valu("v_lshlrev_b32", EHALF, "4", T[2])
    a.valu("v_lshlrev_b32", VTB, "5", VHH)
    a.valu("v_add_u32", VTB, str(TBL), VTB)
    a.salu(f"s_mov_b32 s{S_C128}, 128")
    a.salu(f"s_mov_b32 s{S_M32}, 0xffffffe0")
    a.salu("s_mov_b32 s62, 0xbfb8aa3b")
    a.salu("s_mov_b32 s63, 0xbfb8aa3b")
    a.salu("s_mov_b32 s64, 1.0")
    a.salu("s_mov_b32 s65, 1.0")
    a.salu(f"s_lshl_b32 s{S_ME}, s{S_W}, 11")
    a.salu(f"s_add_u32 s{S_ME}, s{S_ME}, {ESTG}")
    a.salu(f"s_mov_b32 s52, {SRC16}")
    a.salu(f"s_mov_b32 s53, {DLS}")
    a.salu(f"s_mov_b32 s54, {EOFF}")
    a.valu("v_and_b32", T[0], "3", VM)
    a.valu("v_lshrrev_b32", T[1], "4", VM)
    a.valu("v_and_b32", T[2], "4", VM)
    a.valu("v_lshl_add_u32", T[2], T[0], "3", T[2])
    a.valu("v_lshl_add_u32", T[2], T[1], "1", T[2])
    a.valu("v_bfe_u32", T[3], VM, "3", "1")
    a.valu("v_add_u32", T[2], T[2], T[3])
    a.valu("v_lshl_add_u32", T[0], T[1], "2", T[0])
    a.valu("v_xor_b32", T[0], T[0], VHH)
    a.valu("v_lshlrev_b32", T[0], "4", T[0])
    a.valu("v_lshl_add_u32", T[0], T[2], "7", T[0])
    a.valu("v_add_u32", VA[0], f"s{S_MX}", T[0])
    for ks in range(1, 4):
        a.valu("v_xor_b32", VA[ks], str(32 * ks), VA[0])
    a.valu("v_xor_b32", T[0], T[3], VHH)
    a.valu("v_lshlrev_b32", T[0], "4", T[0])
    a.valu("v_lshl_add_u32", T[0], VM, "5", T[0])
    a.valu("v_add_u32", VE, f"s{S_ME}", T[0])
    a.valu("v_lshrrev_b32", T[0], "4", TID)
    a.valu("v_and_b32", T[1], "6", TID)
    a.valu("v_lshlrev_b32", T[1], "2", T[1])
    a.valu("v_bfe_u32", T[2], TID, "3", "1")
    a.valu("v_lshl_add_u32", T[1], T[2], "2", T[1])
    a.valu("v_and_b32", T[2], "1", TID)
    a.valu("v_lshl_add_u32", T[1], T[2], "1", T[1])
    a.valu("v_mov_b32", T[3], "0x3f80")
    a.valu("v_mov_b32", T[4], "0x3f800000")
    a.valu("v_cmp_eq_u32", "vcc", T[0], T[1])
    a.valu("v_cndmask_b32", T[3], "0", T[3], "vcc")
    a.valu("v_add_u32", T[1], "1", T[1])
    a.valu("v_cmp_eq_u32", "vcc", T[0], T[1])
    a.valu("v_cndmask_b32", T[4], "0", T[4], "vcc")
    a.valu("v_or_b32", T[3], T[3], T[4])
    a.valu("v_cmp_eq_u32", "vcc", "31", T[0])
    a.valu("v_mov_b32", T[4], "0")
    a.valu("v_cndmask_b32", T[3], T[3], T[4], "vcc")
    a.valu("v_lshlrev_b32", T[5], "2", TID)
    a.valu("v_add_u32", T[6], str(TBL), T[5])
    a.ds_write("ds_write_b32", T[6], T[3])
    a.valu("v_add_u32", T[5], str(CNT), T[5])
    a.valu("v_cmp_gt_u32", "vcc", str(NZERO), TID)
    a.salu("s_and_saveexec_b64 s[42:43], vcc")
    a.ds_write("ds_write_b32", T[5], T[4])
    a.salu("s_mov_b64 exec, s[42:43]")
    a.label("M_NOSETUP")
    a.valu("v_mov_b32", T[6], "1")
    a.salu(f"s_mov_b32 s38, {CNT}")
    a.salu(f"s_mov_b32 s47, {4 * TC}")
    a.valu("v_and_b32", T[5], "15", TID)
    a.valu("v_lshl_add_u32", T[5], T[5], "2", "s38")
    a.salu(f"s_cmp_eq_u32 s{S_ROUND}, 0")
    a.salu("s_cbranch_scc1 M_RW8")
    a.wait(vm=0)
    a.label("M_RW8")
    a.wait(vm=8, lgkm=0)
    a.barrier()
    stamp(2)
    for i, p_, K in recs():
        lab = f"M_AT_{i}"
        mask(i, lab)
        a.valu("v_bfe_u32", T[0], REC + 2 * i, "16", "3")
        a.valu("v_lshl_add_u32", BS + i, T[0], "6", T[5])
        a.ds_add_rtn(RANK + i, BS + i, T[6])
        a.label(lab)
    a.salu("s_mov_b64 exec, s[40:41]")
    a.salu("s_cbranch_execz M_AT_DONE")
    a.valu("v_mov_b32", T[0], str(FLAG))
    a.ds_write("ds_write_b32", T[0], T[6])
    a.label("M_AT_DONE")
    a.salu("s_mov_b64 exec, -1")
    a.wait(vm=0, lgkm=0)
    a.barrier()
    WA = {(ks, c): 112 + (ks * 2 + c) * 4 for ks in range(4) for c in range(2)}
    XT = [144, 148, 152, 156]
    a.salu(f"s_cmp_eq_u32 s{S_ROUND}, 0")
    a.salu("s_cbranch_scc0 M_NOWR")
    a.valu("v_and_b32", T[0], "63", TID)
    a.valu("v_lshlrev_b32", T[0], "4", T[0])
    def slot(k):
        return (k >> 2) * 8192 + 4096 + (k & 3) * 1024
    for dst, mb in ((WA, 0), (WB, 8)):
        for ks in range(4):
            for c in range(2):
                a.ds_read("ds_read_b128", dst[(ks, c)], 4, T[0], off=slot(mb + ks * 2 + c))
    for c in range(2):
        a.ds_read("ds_read_b128", WC[c], 4, T[0], off=slot(24 + c))
    a.label("M_NOWR")
    a.valu("v_and_b32", T[0], "63", TID)
    a.valu("v_lshl_add_u32", T[0], T[0], "2", "s38")
    a.ds_read("ds_read_b32", T[1], 1, T[0])
    a.ds_read("ds_read_b32", T[2], 1, T[0], off=256)
    a.valu("v_mov_b32", T[5], str(FLAG))
    a.ds_read("ds_read_b32", T[5], 1, T[5])
    a.valu("v_bfe_u32", T[6], TID, "4", "2")
    a.valu("v_mul_u32_u24", T[6], str(TC), T[6])
    a.wait(lgkm=0)
    a.valu("v_readfirstlane_b32", f"s{S_MORE}", T[5], flags={'readlane': 1})
    a.valu("v_mov_b32", T[3], T[1])
    a.valu("v_mov_b32", T[4], T[2])
    for sh in (1, 2, 4, 8):
        a.valu("v_add_u32_dpp", T[3], T[3], T[3], mods=f"row_shr:{sh} row_mask:0xf bank_mask:0xf bound_ctrl:0", flags={'dpp': 1})
        a.valu("v_add_u32_dpp", T[4], T[4], T[4], mods=f"row_shr:{sh} row_mask:0xf bank_mask:0xf bound_ctrl:0", flags={'dpp': 1})
    a.valu("v_max_u32", T[5], T[3], T[4])
    a.valu("v_cmp_lt_u32", "vcc", str(TC - 32), T[5])
    a.salu("s_cbranch_vccnz M_OVERFLOW")
    a.valu("v_sub_u32", T[1], T[3], T[1])
    a.valu("v_sub_u32", T[2], T[4], T[2])
    a.valu("v_add_u32", T[1], T[1], T[6])
    a.valu("v_add3_u32", T[2], T[2], T[6], "s47")
    a.ds_write("ds_write_b32", T[0], T[1], off=BASE - CNT)
    a.ds_write("ds_write_b32", T[0], T[2], off=BASE - CNT + 256)
    a.salu(f"s_and_b32 s55, s{S_ROUND}, 0x7fffffff")
    a.salu("s_cmp_eq_u32 s55, 0")
    a.salu("s_cbranch_scc0 M_NOASSIGN")
    a.salu(f"s_mov_b32 s{S_T}, s{S_W}")
    if PAIR:
        a.valu("v_and_b32", T[5], "15", TID)
        a.valu("v_cmp_eq_u32", "vcc", "15", T[5])
        a.valu("v_bfe_u32", T[5], TID, "4", "2")
        a.valu("v_lshlrev_b32", T[5], "2", T[5])
        a.valu("v_add_u32", T[5], str(FLAG + 16), T[5])
        a.salu("s_mov_b64 exec, vcc")
        a.ds_write("ds_write_b32", T[5], T[3])
        a.ds_write("ds_write_b32", T[5], T[4], off=16)
        a.salu("s_mov_b64 exec, -1")
        a.valu("v_and_b32", T[5], "7", TID)
        a.valu("v_lshlrev_b32", T[6], "2", T[5])
        a.valu("v_add_u32", T[6], str(FLAG + 16), T[6])
        a.wait(lgkm=0)
        a.ds_read("ds_read_b32", T[6], 1, T[6])
        a.wait(lgkm=0)
        a.valu("v_lshl_or_b32", T[6], T[6], "3", T[5])
        a.valu("v_mov_b32", T[5], "0")
        for j in range(8):
            a.valu("v_readlane_b32", "s55", T[6], str(j), flags={'readlane': 1})
            a.valu("v_cmp_gt_u32", "vcc", "s55", T[6])
            a.valu("v_addc_co_u32", T[5], "vcc", "0", T[5], "vcc", sw=[106, 107])
        a.salu(f"s_sub_u32 s55, 11, s{S_W}")
        a.salu(f"s_cmp_lt_u32 s{S_W}, 4")
        a.salu(f"s_cselect_b32 s55, s{S_W}, s55")
        a.valu("v_cmp_eq_u32", "vcc", "s55", T[5])
        a.salu(f"s_ff1_i32_b64 s{S_T}, vcc")
    a.salu("s_mul_i32 s42, s2, 196")
    a.salu(f"s_mul_i32 s43, s{S_T}, 49")
    a.salu("s_lshr_b32 s43, s43, 1")
    a.salu("s_add_u32 s42, s42, s43")
    a.salu("s_lshl_b32 s46, s42, 7")
    a.salu(f"s_sub_u32 s55, s{S_T}, s{S_W}")
    a.salu("s_lshl_b32 s55, s55, 13")
    for ks in range(4):
        a.valu("v_add_u32", T[5], "s55", VA[ks])
        a.ds_read("ds_read_b128", XT[ks], 4, T[5])
    a.label("M_NOASSIGN")
    a.salu(f"s_and_b32 s55, s{S_T}, 3")
    a.salu("s_lshl_b32 s55, s55, 4")
    a.salu("s_add_u32 s55, s55, 15")
    a.valu("v_readlane_b32", "s51", T[3], "s55", flags={'readlane': 1})
    a.valu("v_readlane_b32", "s56", T[4], "s55", flags={'readlane': 1})
    a.salu(f"s_cmp_ge_u32 s{S_T}, 4")
    a.salu("s_cselect_b32 s51, s56, s51")
    a.salu("s_add_u32 s50, s51, 31")
    a.salu("s_and_b32 s50, s50, 0xffffffe0")
    a.salu(f"s_mul_i32 s49, s{S_T}, {TC}")
    a.wait(lgkm=0)
    for i, p_, K in recs():
        lab = f"M_BS_{i}"
        mask(i, lab)
        a.ds_read("ds_read_b32", BS + i, 1, BS + i, off=BASE - CNT)
        a.label(lab)
    a.salu("s_mov_b64 exec, -1")

    def place(pos, w0, w1, dl):
        a.valu("v_lshl_add_u32", T[4], pos, "1", "s52")
        a.ds_write("ds_write_b16", T[4], w0)
        a.valu("v_lshl_add_u32", T[6], pos, "2", "s54")
        a.ds_write("ds_write_b32", T[6], w1)

    a.valu("v_and_b32", T[3], "63", TID)
    a.salu("s_sub_u32 s55, s50, s51")
    a.salu("s_add_u32 s56, s49, s51")
    a.valu("v_cmp_gt_u32", "vcc", "s55", T[3])
    a.valu("v_add_u32", T[3], "s56", T[3])
    a.valu("v_mov_b32", T[0], "0")
    a.valu("v_mov_b32", T[1], "31")
    a.salu("s_mov_b64 exec, vcc")
    place(T[3], T[0], T[1], T[1])
    a.salu("s_mov_b64 exec, -1")
    a.wait(lgkm=0)
    for i, p_, K in recs():
        lab = f"M_PL_{i}"
        mask(i, lab)
        a.valu("v_add_u32", T[3], BS + i, RANK + i)
        place(T[3], REC + 2 * i, REC + 2 * i + 1, T[5])
        a.label(lab)
    a.salu("s_mov_b64 exec, -1")
    a.salu(f"s_lshr_b32 s{S_N}, s50, 5")
    a.salu(f"s_mov_b32 s{S_I}, 0")
    a.valu("v_and_b32", T[1], "63", TID)
    a.salu("s_lshl_b32 s55, s49, 1")
    a.salu("s_add_u32 s56, s55, s52")
    a.valu("v_lshrrev_b32", T[0], "3", T[1])
    a.valu("v_lshl_add_u32", VSRC, T[0], "3", "s56")
    a.salu("s_lshl_b32 s56, s49, 2")
    a.salu("s_add_u32 s56, s56, s54")
    def pi_of(dst, p):
        a.valu("v_and_b32", dst, "3", p)
        a.valu("v_lshrrev_b32", T[5], "1", p)
        a.valu("v_and_or_b32", dst, T[5], "12", dst)
        a.valu("v_lshlrev_b32", T[5], "2", p)
        a.valu("v_and_or_b32", dst, T[5], "16", dst)
    a.valu("v_lshrrev_b32", T[0], "1", T[1])
    pi_of(T[2], T[0])
    a.valu("v_lshl_add_u32", VEO, T[2], "2", "s56")
    a.valu("v_and_b32", T[0], "31", T[1])
    pi_of(T[2], T[0])
    a.valu("v_lshl_add_u32", VEM, T[2], "2", "s56")
    a.wait(lgkm=0)
    a.barrier()
    stamp(3)
    a.ds_read("ds_read_b64", PS, 2, VSRC)
    a.ds_read("ds_read_b32", PE, 1, VEO)
    a.ds_read("ds_read_b64", SD, 2, VSRC, off=64)
    a.ds_read("ds_read_b32", SD + 2, 1, VEO, off=128)
    a.ds_read("ds_read_b32", DM, 1, VEM)
    a.valu("v_and_b32", T[0], "31", TID)
    a.valu("v_lshl_add_u32", T[0], T[0], "6", VTB)
    a.ds_read("ds_read_b128", IDB[0], 4, T[0])
    a.ds_read("ds_read_b128", IDB[1], 4, T[0], off=16)
    a.wait(lgkm=0)
    a.salu(f"s_cmp_eq_u32 s{S_N}, 0")
    a.salu("s_cbranch_scc1 M_PRE_DONE")
    dma_issue(a, PS, PE)
    a.salu(f"s_cmp_eq_u32 s{S_N}, 1")
    a.salu("s_cbranch_scc1 M_PRE_DONE")
    a.salu(f"s_xor_b32 s{S_MX}, s{S_MX}, 4096")
    a.salu(f"s_xor_b32 s{S_ME}, s{S_ME}, 1024")
    dma_issue(a, SD, SD + 2)
    a.salu(f"s_xor_b32 s{S_MX}, s{S_MX}, 4096")
    a.salu(f"s_xor_b32 s{S_ME}, s{S_ME}, 1024")
    a.label("M_PRE_DONE")
    a.valu("v_add_u32", VSRC, "128", VSRC)
    a.valu("v_add_u32", VEO, "256", VEO)
    a.valu("v_add_u32", VEM, "128", VEM)
    a.salu(f"s_and_b32 s38, s{S_ROUND}, 0x7fffffff")
    a.salu("s_cmp_eq_u32 s38, 0")
    a.salu("s_cbranch_scc0 M_NOAT")
    for c, o in ((0, GG), (1, HH)):
        for ks in range(4):
            a.mfma32(o, XT[ks], WA[(ks, c)], None if ks == 0 else o)
    for c, o in ((0, GG), (1, HH)):
        if FOLD:
            for k in range(16):
                a.valu("v_mul_f32", o + k, "s62", o + k)
        for s in range(2):
            for k in range(4):
                a.valu("v_cvt_pk_bf16_f32", AT[(s, c)] + k, o + 8 * s + 2 * k, o + 8 * s + 2 * k + 1)
    for r in range(104, 168):
        a.valu("v_mov_b32", r, "0")
    a.label("M_NOAT")
    a.salu(f"s_lshl_b32 s57, s{S_W}, 2")
    a.salu(f"s_add_u32 s57, s57, {PROG}")
    a.valu("v_mov_b32", VPROG, "s57")
    a.fence()
    a.salu(f"s_cmp_ge_u32 s{S_I}, s{S_N}")
    a.salu("s_cbranch_scc1 M_LOOP_END")

    def operand_reads(tag):
        a.salu(f"s_add_u32 s39, s38, 1")
        a.salu(f"s_cmp_lt_u32 s39, s{S_N}")
        a.salu(f"s_cbranch_scc1 M_W5{tag}")
        a.wait(vm=0)
        a.salu(f"s_branch M_W0{tag}")
        a.label(f"M_W5{tag}")
        a.wait(vm=5)
        a.label(f"M_W0{tag}")
        a.valu("v_and_b32", T[0], "31", DM)
        a.valu("v_lshl_add_u32", TOH, T[0], "6", VTB)
        a.ds_read("ds_read_b128", OH[0], 4, TOH)
        a.ds_read("ds_read_b128", OH[1], 4, TOH, off=16)
        for ks in range(4):
            a.ds_read("ds_read_b128", X[ks], 4, VA[ks])
        a.ds_read("ds_read_b128", EOP, 4, VE)
        a.ds_read("ds_read_b64", PS, 2, VSRC)
        a.ds_read("ds_read_b32", PE, 1, VEO)
        a.ds_read("ds_read_b32", DM, 1, VEM)
        if BAL:
            a.salu(f"s_sub_u32 s57, s{S_N}, s38")
            a.valu("v_mov_b32", T[1], "s57")
            a.valu("v_xor_b32", T[2], "16", VPROG)
            a.ds_write("ds_write_b32", VPROG, T[1])
            a.ds_read("ds_read_b32", T[5], 1, T[2])
        for ks in range(4):
            a.valu("v_xor_b32", VA[ks], "0x1000", VA[ks])
        a.valu("v_xor_b32", VE, "0x400", VE)
        a.valu("v_add_u32", VSRC, "64", VSRC)
        a.valu("v_add_u32", VEO, "0x80", VEO)
        a.valu("v_add_u32", VEM, "0x80", VEM)

    VWV = TOH
    def wv_reads(c):
        a.valu("v_and_b32", T[6], "63", TID)
        a.valu("v_lshlrev_b32", T[6], "4", T[6])
        a.valu("v_add_u32", T[6], str(WVL), T[6])
        for ks in range(4):
            a.ds_read("ds_read_b128", WVB[ks], 4, T[6], off=(ks * 2 + c) * 1024)

    def g_mfmas(c):
        g = GG if c == 0 else GB
        l = [lambda ks=ks: a.mfma32(g, X[ks], WB[(ks, c)], None if ks == 0 else g) for ks in range(4)]
        l.append(lambda: a.mfma32(g, EOP, WC[c], g))
        l.append(lambda: a.mfma32(g, OH[0], AT[(0, c)], g))
        l.append(lambda: a.mfma32(g, OH[1], AT[(1, c)], g))
        return l
    def h_mfmas():
        return [lambda ks=ks: a.mfma32(HH, X[ks], WVB[ks], None if ks == 0 else HH) for ks in range(4)]
    def seg_mfmas(c):
        g = GG if c == 0 else GB
        return [lambda: a.mfma32(DEN[c], SD, g, DEN[c]), lambda: a.mfma32(DEN[c], SD + 4, g + 4, DEN[c]),
                lambda: a.mfma32(NUM[c], SD, HH, NUM[c]), lambda: a.mfma32(NUM[c], SD + 4, HH + 4, NUM[c])]
    def valu_ops(c):
        g = GG if c == 0 else GB
        v = []
        if not FOLD:
            v += [lambda k=k: a.valu("v_mul_f32", g + k, "s62", g + k) for k in range(16)]
        v += [lambda k=k: a.valu("v_exp_f32", g + k, g + k, trans=True) for k in range(16)]
        v += [lambda k=k: a.valu("v_add_f32", g + k, "1.0", g + k) for k in range(16)]
        v += [lambda k=k: a.valu("v_rcp_f32", g + k, g + k, trans=True) for k in range(16)]
        v += [lambda k=k: a.valu("v_mul_f32", HH + k, g + k, HH + k) for k in range(16)]
        v += [lambda k=k: a.valu("v_cvt_pk_bf16_f32", g + k, g + 2 * k, g + 2 * k + 1) for k in range(8)]
        v += [lambda k=k: a.valu("v_cvt_pk_bf16_f32", HH + k, HH + 2 * k, HH + 2 * k + 1) for k in range(8)]
        return v
    if NOCOMP:
        _vo = valu_ops
        valu_ops = lambda c: [(lambda: None)] * len(_vo(c))
        g_mfmas = lambda c: [(lambda: None)] * 7
        h_mfmas = lambda: [(lambda: None)] * 4
        seg_mfmas = lambda c: [(lambda: None)] * 4
    def run_stage(v, events):
        for i in range(len(v) + 1):
            for e in events.get(i, []):
                e()
            if i < len(v):
                v[i]()

    a.salu(f"s_mov_b32 s38, s{S_I}")
    operand_reads("P")
    wv_reads(0)
    for k in range(8):
        a.valu("v_mov_b32", SD + k, "0")
        a.valu("v_mov_b32", GB + k, "0")
        a.valu("v_mov_b32", HH + k, "0")
    a.wait(lgkm=0)
    for m in g_mfmas(0):
        m()
    a.fence()

    a.label("M_GROUP")
    def prio():
        if BAL:
            a.valu("v_readfirstlane_b32", "s58", T[5], flags={'readlane': 1})
            a.salu("s_cmp_ge_u32 s57, s58")
            a.salu("s_cbranch_scc1 M_PHI")
            a.salu("s_setprio 0")
            a.salu("s_branch M_PDONE")
            a.label("M_PHI")
            a.salu("s_setprio 1")
            a.label("M_PDONE")
    def dma_block():
        a.salu(f"s_add_u32 s38, s{S_I}, 2")
        a.salu(f"s_cmp_lt_u32 s38, s{S_N}")
        a.salu("s_cbranch_scc0 M_NODMA")
        dma_issue(a, PS, PE)
        a.salu("s_branch M_DMAD")
        a.label("M_NODMA")
        a.salu(f"s_cmp_eq_u32 s38, s{S_N}")
        a.salu("s_cbranch_scc0 M_DMAD")
        a.salu(f"s_cmp_eq_u32 s{S_MORE}, 0")
        a.salu("s_cbranch_scc0 M_DMAD")
        a.valu("v_bfe_u32", T[6], TID, "3", "3")
        xtile_dma(T[6])
        a.label("M_DMAD")
        a.salu(f"s_xor_b32 s{S_MX}, s{S_MX}, 4096")
        a.salu(f"s_xor_b32 s{S_ME}, s{S_ME}, 1024")
    def cvt_s():
        for k in range(8):
            a.valu("v_cvt_pk_bf16_f32", SD + k, HH + 2 * k, HH + 2 * k + 1)
    def next_ops():
        a.salu(f"s_add_u32 s38, s{S_I}, 1")
        a.salu(f"s_cmp_lt_u32 s38, s{S_N}")
        a.salu("s_cbranch_scc0 M_NOPF")
        operand_reads("L")
        a.label("M_NOPF")
    ev = {}
    def at(pos, f):
        if FOLD:
            pos = pos * 80 // 96
        ev.setdefault(pos, []).append(f)
    at(0, prio)
    sg = seg_mfmas(1)
    for k in range(4):
        at(4 * k, sg[k])
    at(16, lambda: a.mfma32(HH, OH[0], IDB[0], None))
    at(20, lambda: a.mfma32(HH, OH[1], IDB[1], HH))
    at(24, dma_block)
    at(36, cvt_s)
    hm = h_mfmas()
    for k in range(4):
        at(38 + 4 * k, hm[k])
    at(52, lambda: wv_reads(1))
    gm = g_mfmas(1)
    for k in range(7):
        at(54 + 5 * k, gm[k])
    run_stage(valu_ops(0), ev)
    ev = {}
    sg = seg_mfmas(0)
    for k in range(4):
        at(3 * k, sg[k])
    at(12, lambda: a.wait(lgkm=0))
    hm = h_mfmas()
    for k in range(4):
        at(12 + 4 * k, hm[k])
    at(26, next_ops)
    at(26, lambda: wv_reads(0))
    at(46, lambda: a.wait(lgkm=0))
    gm = g_mfmas(0)
    for k in range(7):
        at(46 + 5 * k, gm[k])
    run_stage(valu_ops(1), ev)
    a.salu(f"s_add_u32 s{S_I}, s{S_I}, 1")
    a.salu(f"s_cmp_lt_u32 s{S_I}, s{S_N}")
    a.salu("s_cbranch_scc1 M_GROUP")
    for m in seg_mfmas(1):
        m()

    a.label("M_LOOP_END")
    a.fence()
    if BAL:
        a.valu("v_mov_b32", T[1], "0")
        a.ds_write("ds_write_b32", VPROG, T[1])
        a.salu("s_setprio 0")
    stamp(4)
    a.salu(f"s_cmp_eq_u32 s{S_MORE}, 0")
    a.salu("s_cbranch_scc1 M_EPI")
    a.wait(vm=0, lgkm=0)
    a.barrier()
    a.valu("v_mov_b32", T[4], "0")
    a.valu("v_lshlrev_b32", T[5], "2", TID)
    a.valu("v_add_u32", T[5], str(CNT), T[5])
    a.valu("v_cmp_gt_u32", "vcc", str(NZERO), TID)
    a.salu("s_and_saveexec_b64 s[40:41], vcc")
    a.ds_write("ds_write_b32", T[5], T[4])
    a.salu("s_mov_b64 exec, s[40:41]")
    a.salu(f"s_add_u32 s{S_ROUND}, s{S_ROUND}, 1")
    a.salu(f"s_add_u32 s{S_DONE}, s{S_DONE}, s{S_STEP}")
    a.salu(f"s_and_b32 s38, s{S_N}, 1")
    a.salu("s_cmp_eq_u32 s38, 0")
    a.salu("s_cbranch_scc1 M_PAR_OK")
    for ks in range(4):
        a.valu("v_xor_b32", VA[ks], "0x1000", VA[ks])
    a.valu("v_xor_b32", VE, "0x400", VE)
    a.salu(f"s_xor_b32 s{S_MX}, s{S_MX}, 4096")
    a.salu(f"s_xor_b32 s{S_ME}, s{S_ME}, 1024")
    a.label("M_PAR_OK")
    a.wait(lgkm=0)
    a.fence()
    a.salu("s_branch M_ROUND")

    a.label("M_OVERFLOW")
    a.wait(vm=0, lgkm=0)
    a.barrier()
    a.valu("v_mov_b32", T[4], "0")
    a.valu("v_lshlrev_b32", T[5], "2", TID)
    a.valu("v_add_u32", T[5], str(CNT), T[5])
    a.valu("v_cmp_gt_u32", "vcc", str(NZERO), TID)
    a.salu("s_and_saveexec_b64 s[40:41], vcc")
    a.ds_write("ds_write_b32", T[5], T[4])
    a.salu("s_mov_b64 exec, s[40:41]")
    a.salu(f"s_mov_b32 s{S_STEP}, 4")
    a.salu(f"s_cmp_eq_u32 s{S_ROUND}, 0")
    a.salu("s_cbranch_scc0 M_OV2")
    a.salu(f"s_mov_b32 s{S_ROUND}, 0x80000000")
    a.label("M_OV2")
    a.wait(lgkm=0)
    a.fence()
    a.salu("s_branch M_ROUND")
    a.label("M_EPI")
    WU = {(ks, c): 40 + (ks * 2 + c) * 4 for ks in range(4) for c in range(2)}
    XE = [72, 76, 80, 84]
    XR = [88, 92, 96, 100]
    a.salu(f"s_cmp_ge_u32 s{S_N}, 2")
    a.salu("s_cbranch_scc1 M_EPI_HAVE")
    a.valu("v_bfe_u32", T[6], TID, "3", "3")
    xtile_dma(T[6])
    a.label("M_EPI_HAVE")
    LANE2, VM2, VHH2 = T[0], T[1], T[2]
    a.valu("v_and_b32", LANE2, "63", TID)
    a.valu("v_and_b32", VM2, "31", LANE2)
    a.valu("v_lshrrev_b32", VHH2, "5", LANE2)
    a.valu("v_lshlrev_b32", T[3], "4", LANE2)
    a.valu("v_add_u32", T[4], str(WUL), T[3])
    for ks in range(4):
        for c in range(2):
            a.ds_read("ds_read_b128", WU[(ks, c)], 4, T[4], off=(ks * 2 + c) * 1024)
    a.valu("v_lshrrev_b32", T[4], "3", LANE2)
    a.valu("v_and_b32", T[5], "3", T[4])
    a.valu("v_and_b32", T[6], "4", T[4])
    a.valu("v_lshl_add_u32", T[6], T[5], "3", T[6])
    a.valu("v_and_b32", T[4], "7", LANE2)
    a.valu("v_xor_b32", T[4], T[4], T[5])
    a.valu("v_lshlrev_b32", T[4], "4", T[4])
    a.valu("v_lshl_add_u32", T[4], T[6], "7", T[4])
    a.valu("v_add_u32", T[4], f"s{S_MX}", T[4])
    a.valu("v_xor_b32", T[5], "64", T[4])
    for c in range(2):
        for r in range(16):
            a.valu("v_add_f32", DEN[c] + r, "0x358637bd", DEN[c] + r)
    for c in range(2):
        for r in range(16):
            a.valu("v_rcp_f32", DEN[c] + r, DEN[c] + r, trans=True)
    for c in range(2):
        for r in range(16):
            a.valu("v_mul_f32", NUM[c] + r, NUM[c] + r, DEN[c] + r)
    a.wait(vm=0)
    for ks in range(4):
        a.ds_read("ds_read_b128", XE[ks], 4, VA[ks])
    a.ds_read("ds_read_b128", XR[0], 4, T[4])
    a.ds_read("ds_read_b128", XR[1], 4, T[4], off=128)
    a.ds_read("ds_read_b128", XR[2], 4, T[5], off=256)
    a.ds_read("ds_read_b128", XR[3], 4, T[5], off=384)
    a.wait(lgkm=0)
    for c in range(2):
        for ks in range(4):
            a.mfma32(NUM[c], XE[ks], WU[(ks, c)], NUM[c])
    a.salu(f"s_lshl_b32 s38, s{S_W}, 13")
    a.valu("v_lshlrev_b32", T[4], "10", VHH2)
    a.valu("v_lshl_add_u32", T[4], VM2, "2", T[4])
    a.valu("v_add_u32", T[4], "s38", T[4])
    a.valu("v_lshlrev_b32", T[5], "5", LANE2)
    a.valu("v_add_u32", T[5], "s38", T[5])
    for c in range(2):
        for r in range(16):
            if (r >> 2) == 3 and (r & 3) >= 1:
                continue
            a.valu("v_max_f32", NUM[c] + r, "0", NUM[c] + r)
            a.ds_write("ds_write_b32", T[4], NUM[c] + r, off=(8 * (r >> 2) + (r & 3)) * 256 + c * 128)
    a.wait(lgkm=0)
    ZR = [104, 112, 120, 128]
    for i in range(4):
        a.ds_read("ds_read_b128", ZR[i], 4, T[5], off=i * 2048)
        a.ds_read("ds_read_b128", ZR[i] + 4, 4, T[5], off=i * 2048 + 16)
    a.valu("v_mov_b32", T[6], "0x40000000")
    a.salu(f"s_and_b32 s38, s{S_T}, 1")
    a.salu("s_lshl_b32 s38, s38, 3")
    a.valu("v_cmp_gt_u32", "vcc", "s38", LANE2)
    a.valu("v_cndmask_b32", T[6], T[6], T[3], "vcc")
    a.wait(vm=0, lgkm=0)
    for i in range(4):
        for k in range(4):
            a.valu("v_lshlrev_b32", T[0], "16", XR[i] + k)
            a.valu("v_and_b32", T[1], "0xffff0000", XR[i] + k)
            a.valu("v_add_f32", T[0], T[0], ZR[i] + 2 * k)
            a.valu("v_add_f32", T[1], T[1], ZR[i] + 2 * k + 1)
            a.valu("v_cvt_pk_bf16_f32", XR[i] + k, T[0], T[1])
        a.bstore("buffer_store_dwordx4", XR[i], 4, T[3] if i < 3 else T[6], SRD_O, "s46", i * 1024)
    if INSTR:
        stamp(5)
        a.salu(f"s_cmp_lg_u32 s2, {INSTR}")
        a.salu("s_cbranch_scc1 M_END")
        a.salu("s_load_dwordx2 s[64:65], s[0:1], 80")
        a.wait(lgkm=0)
        srd(a, 64, 64, 256)
        a.salu(f"s_lshl_b32 s70, s{S_W}, 5")
        a.valu("v_mov_b32", T[0], "0")
        for k, sreg in enumerate((44, 45, 100, 101, 60, 61)):
            a.salu(f"s_sub_u32 s71, s{sreg}, s44")
            if k == 0:
                a.salu(f"s_mov_b32 s71, s{S_N}")
            a.valu("v_mov_b32", T[1], "s71")
            a.bstore("buffer_store_dword", T[1], 1, T[0], 64, "s70", 4 * k)
    a.label("M_END")
    a.salu("s_endpgm")
    return a.text()


def kd(name, vg, sg):
    return f""".amdhsa_kernel {name}
  .amdhsa_next_free_vgpr {vg}
  .amdhsa_next_free_sgpr {sg}
  .amdhsa_accum_offset {(vg + 3) // 4 * 4}
  .amdhsa_group_segment_fixed_size 0
  .amdhsa_kernarg_size 96
  .amdhsa_user_sgpr_count 2
  .amdhsa_user_sgpr_kernarg_segment_ptr 1
  .amdhsa_system_sgpr_workgroup_id_x 1
.end_amdhsa_kernel
"""

def main():
    out = HEADER.format(mainlds=MAINLDS)
    if PF:
        out = out.replace("grid=(255,1,1)", "grid=(505,1,1)")
    out += gen_part()
    out += gen_main()
    out += '.section .rodata,"a"\n.p2align 6\n'
    out += kd("gp_part_kernel", 64, 64)
    out += ".p2align 6\n"
    out += kd("gp_main_kernel", 256, 102)
    path = sys.argv[1] if len(sys.argv) > 1 else "gather_scatter__edge_featured_mpnn_gatedgcn__graph.s"
    open(path, "w").write(out)
    print("wrote", path, len(out), "bytes; main lds", MAINLDS)

if __name__ == "__main__":
    main()
```

```python
import sys, os
sys.path.insert(0, os.path.dirname(__file__))
from asmlib import Asm, vr, sr, R

N = 50000; E = 800000
G = 250; CH = 3200; NB = 250; NPB = 200
WS_REC = 0
WS_TAB = 6400000
WS_WT = 6668288
WS_SIZE = 8 << 20
INSTR = int(os.environ.get("INSTR", "0"))
NOCOMP = int(os.environ.get("NOCOMP", "0"))
NOMEM = int(os.environ.get("NOMEM", "0"))
PRIO = int(os.environ.get("PRIO", "1"))
ENT = int(os.environ.get("ENT", "0"))
BAL = int(os.environ.get("BAL", "1"))
PK = int(os.environ.get("PK", "0"))
K1ST = os.environ.get("K1ST", "")
K1DIRECT = int(os.environ.get("K1DIRECT", "0"))
PF = int(os.environ.get("PF", "0"))
FOLD = int(os.environ.get("FOLD", "1"))

HEADER = """; Kernarg layout for this problem (96 bytes, ptrs only, base s[0:1]):
;   offset  16: d_in[2] src  shape=(800000,) dtype=int32 strides=(4,) contiguous=True
; in LDS, gather x[src]/e_attr by LDS-DMA, MFMA gates, MFMA segment sums, epilogue.
; @launch kernel=gp_part_kernel grid=(255,1,1) block=(640,1,1) lds=27648
; @launch kernel=gp_main_kernel grid=(256,1,1) block=(512,1,1) lds={mainlds}
.amdgcn_target "amdgcn-amd-amdhsa--gfx950"
.text
"""

def srd(a, d, base, nbytes):
    a.salu(f"s_mov_b32 s{d}, s{base}")
    a.salu(f"s_and_b32 s{d+1}, s{base+1}, 0xffff")
    a.salu(f"s_mov_b32 s{d+2}, {nbytes}")
    a.salu(f"s_mov_b32 s{d+3}, 0x00020000")


def gen_part():
    a = Asm()
    a.raw(".globl gp_part_kernel\n.p2align 8\n.type gp_part_kernel,@function\ngp_part_kernel:")
    a.salu("s_cmp_gt_u32 s2, 254")
    a.salu("s_cbranch_scc1 P_PF" if PF else "s_cbranch_scc1 P_END")
    a.salu("s_load_dwordx4 s[4:7], s[0:1], 16")
    a.salu("s_load_dwordx2 s[8:9], s[0:1], 88")
    a.salu("s_cmp_ge_u32 s2, 250")
    a.salu("s_cbranch_scc1 P_WEIGHTS")
    a.valu("v_lshlrev_b32", 1, "2", 0)
    a.valu("v_mov_b32", 2, "0")
    a.valu("v_mov_b32", 4, "1")
    a.valu("v_cmp_gt_u32", "vcc", "256", 0)
    a.salu("s_and_saveexec_b64 s[30:31], vcc")
    a.ds_write("ds_write_b32", 1, 2)
    a.salu("s_mov_b64 exec, s[30:31]")
    a.wait(lgkm=0)
    srd(a, 12, 4, E * 4)
    srd(a, 16, 6, E * 4)
    srd(a, 20, 8, WS_SIZE)
    a.salu("s_mul_i32 s3, s2, 12800")
    a.valu("v_add_u32", 3, "s3", 1)
    a.salu("s_mov_b32 s40, 5120")
    a.salu("s_mov_b32 s41, 10240")
    locs = [("0", 0), ("0", 2560), ("s40", 0), ("s40", 2560), ("s41", 0)]
    for k in range(5):
        a.bload("buffer_load_dword", 10 + k, 1, 3, 16, locs[k][0], locs[k][1])
    for k in range(5):
        a.bload("buffer_load_dword", 15 + k, 1, 3, 12, locs[k][0], locs[k][1])
    a.salu("s_mov_b32 s42, 21913099")
    a.valu("v_lshlrev_b32", 9, "3", 3)
    a.barrier()
    a.wait(vm=5)
    for k in range(5):
        d = 10 + k
        a.valu("v_mul_hi_u32", 5, d, "s42")
        a.valu("v_mul_u32_u24", 6, "196", 5)
        a.valu("v_sub_u32", 6, d, 6)
        a.valu("v_lshlrev_b32", 20 + k, "2", 5)
        a.ds_add_rtn(25 + k, 20 + k, 4)
        a.valu("v_lshl_add_u32", 7, 6, "1", "1")
        a.valu("v_mul_u32_u24", 7, "1338", 7)
        a.valu("v_lshrrev_b32", 7, "16", 7)
        a.valu("v_mul_u32_u24", 8, "49", 7)
        a.valu("v_lshrrev_b32", 8, "1", 8)
        a.valu("v_sub_u32", 8, 6, 8)
        a.valu("v_lshlrev_b32", 10 + k, "16", 7)
        a.valu("v_add3_u32", 31 + 2 * k, 9, 8, "s%d" % (44 + k)) if False else None
        a.valu("v_add_u32", 31 + 2 * k, str(k * 20480), 9)
        a.valu("v_or_b32", 31 + 2 * k, 31 + 2 * k, 8)
    a.wait(vm=0)
    for k in range(5):
        a.valu("v_or_b32", 30 + 2 * k, 10 + k, 15 + k)
    a.wait(lgkm=0)
    a.barrier()
    a.valu("v_cmp_gt_u32", "vcc", "64", 0)
    a.salu("s_and_saveexec_b64 s[30:31], vcc")
    a.salu("s_cbranch_execz P_SCAN_DONE")
    a.valu("v_lshlrev_b32", 40, "4", 0)
    a.ds_read("ds_read_b128", 44, 4, 40)
    a.wait(lgkm=0)
    a.valu("v_add_u32", 48, 44, 45)
    a.valu("v_add_u32", 49, 48, 46)
    a.valu("v_add_u32", 50, 49, 47)
    a.valu("v_mov_b32", 51, 50)
    for sh in (1, 2, 4, 8):
        a.valu("v_add_u32_dpp", 51, 51, 51, mods=f"row_shr:{sh} row_mask:0xf bank_mask:0xf bound_ctrl:0", flags={'dpp': 1})
    a.valu("v_add_u32_dpp", 51, 51, 51, mods="row_bcast:15 row_mask:0xa bank_mask:0xf", flags={'dpp': 1})
    a.valu("v_add_u32_dpp", 51, 51, 51, mods="row_bcast:31 row_mask:0xc bank_mask:0xf", flags={'dpp': 1})
    a.valu("v_sub_u32", 52, 51, 50)
    a.valu("v_add_u32", 53, 52, 44)
    a.valu("v_add_u32", 54, 52, 48)
    a.valu("v_add_u32", 55, 52, 49)
    a.ds_write("ds_write_b128", 40, 52, 4, off=1024)
    a.salu("s_lshl_b32 s43, s2, 2")
    a.salu(f"s_add_u32 s43, s43, {WS_TAB}")
    a.valu("v_lshlrev_b32", 41, "12", 0)
    for j in range(4):
        a.bstore("buffer_store_dword", 52 + j, 1, 41, 20, "s43", j * 1024)
    a.valu("v_cmp_eq_u32", "vcc", "63", 0)
    a.salu("s_and_b64 exec, exec, vcc")
    a.salu("s_add_u32 s43, s43, 4096")
    a.bstore("buffer_store_dword", 51, 1, 41, 20, "s43", 0)
    a.wait(lgkm=0)
    a.label("P_SCAN_DONE")
    a.salu("s_mov_b64 exec, s[30:31]")
    a.barrier()
    for k in range(5):
        a.ds_read("ds_read_b32", 44 + k, 1, 20 + k, off=1024)
    a.wait(lgkm=0)
    if K1DIRECT:
        a.salu("s_mul_i32 s44, s2, 25600")
        for k in range(5):
            a.valu("v_add_u32", 5 + k, 44 + k, 25 + k)
            a.valu("v_lshlrev_b32", 5 + k, "3", 5 + k)
            a.bstore("buffer_store_dwordx2", 30 + 2 * k, 2, 5 + k, 20, "s44")
        a.salu("s_endpgm")
    for k in range(5):
        a.valu("v_add_u32", 5, 44 + k, 25 + k)
        a.valu("v_lshlrev_b32", 5, "3", 5)
        a.ds_write("ds_write_b64", 5, 30 + 2 * k, 2, off=2048)
    a.wait(lgkm=0)
    a.barrier()
    a.valu("v_lshlrev_b32", 5, "4", 0)
    a.salu("s_mul_i32 s44, s2, 25600")
    a.ds_read("ds_read_b128", 44, 4, 5, off=2048)
    a.ds_read("ds_read_b128", 48, 4, 5, off=2048 + 10240)
    a.valu("v_cmp_gt_u32", "vcc", "320", 0)
    a.salu("s_and_saveexec_b64 s[30:31], vcc")
    a.ds_read("ds_read_b128", 52, 4, 5, off=2048 + 20480)
    a.salu("s_mov_b64 exec, s[30:31]")
    a.salu("s_add_u32 s45, s44, 10240")
    a.salu("s_add_u32 s46, s44, 20480")
    a.wait(lgkm=2)
    a.bstore("buffer_store_dwordx4", 44, 4, 5, 20, "s44", extra=K1ST)
    a.wait(lgkm=1)
    a.bstore("buffer_store_dwordx4", 48, 4, 5, 20, "s45", extra=K1ST)
    a.wait(lgkm=0)
    a.salu("s_and_saveexec_b64 s[30:31], vcc")
    a.bstore("buffer_store_dwordx4", 52, 4, 5, 20, "s46", extra=K1ST)
    a.salu("s_endpgm")

    a.label("P_WEIGHTS")
    a.salu("s_sub_u32 s3, s2, 250")
    a.salu("s_lshl_b32 s40, s3, 13")
    a.salu(f"s_add_u32 s40, s40, {WS_WT}")
    a.salu("s_mov_b32 s41, 32")
    a.salu("s_cmp_eq_u32 s3, 1")
    a.salu("s_cselect_b32 s41, 40, s41")
    a.salu("s_cmp_eq_u32 s3, 2")
    a.salu("s_cselect_b32 s41, 64, s41")
    a.salu("s_cmp_eq_u32 s3, 3")
    a.salu("s_cselect_b32 s41, 56, s41")
    a.salu("s_cmp_eq_u32 s3, 4")
    a.salu("s_cselect_b32 s41, 48, s41")
    a.salu("s_movk_i32 s42, 0x2000")
    a.salu("s_cselect_b32 s42, 2048, s42")
    a.salu("s_load_dwordx2 s[12:13], s[0:1], s41")
    a.wait(lgkm=0)
    srd(a, 20, 8, WS_SIZE)
    srd(a, 28, 12, 0)
    a.salu("s_mov_b32 s30, s42")
    for j in range(7):
        a.valu("v_add_u32", 1, str(640 * j), 0)
        a.valu("v_lshlrev_b32", 2, "1", 1)
        a.bload("buffer_load_ushort", 10 + j, 1, 2, 28)
        a.valu("v_lshrrev_b32", 3, "10", 1)
        a.valu("v_bfe_u32", 4, 1, "5", "1")
        a.valu("v_lshl_add_u32", 3, 3, "1", 4)
        a.valu("v_bfe_u32", 4, 1, "9", "1")
        a.valu("v_lshl_add_u32", 3, 3, "1", 4)
        a.valu("v_and_b32", 4, "31", 1)
        a.valu("v_lshl_add_u32", 3, 3, "5", 4)
        a.valu("v_bfe_u32", 4, 1, "6", "3")
        a.valu("v_lshl_add_u32", 3, 3, "3", 4)
        a.valu("v_lshlrev_b32", 3, "1", 3)
        a.valu("v_mov_b32", 5, "0x40000000")
        a.valu("v_cmp_gt_u32", "vcc", "s42", 2)
        a.valu("v_cndmask_b32", 20 + j, 5, 3, "vcc")
    a.wait(vm=0)
    if FOLD:
        a.salu("s_mov_b32 s44, 1.0")
        a.salu("s_cmp_eq_u32 s3, 1")
        a.salu("s_cselect_b32 s44, 0xbfb8aa3b, s44")
        a.salu("s_cmp_eq_u32 s3, 4")
        a.salu("s_cselect_b32 s44, 0xbfb8aa3b, s44")
        for j in range(7):
            a.valu("v_lshlrev_b32", 10 + j, "16", 10 + j)
            a.valu("v_mul_f32", 10 + j, "s44", 10 + j)
            a.valu("v_cvt_pk_bf16_f32", 10 + j, 10 + j, 10 + j)
    for j in range(7):
        a.bstore("buffer_store_short", 10 + j, 1, 20 + j, 20, "s40")
    a.label("P_END")
    a.salu("s_endpgm")
    if PF:
        a.label("P_PF")
        a.salu("s_sub_u32 s3, s2, 255")
        a.salu("s_cmp_ge_u32 s3, 250")
        a.salu("s_cbranch_scc1 P_END")
        a.salu("s_load_dwordx4 s[4:7], s[0:1], 0")
        a.wait(lgkm=0)
        srd(a, 12, 4, N * 128)
        srd(a, 16, 6, E * 32)
        a.valu("v_lshlrev_b32", 1, "4", 0)
        a.salu("s_mul_i32 s20, s3, 102400")
        for j in range(10):
            a.bload("buffer_load_dwordx4", 4 + 4 * j, 4, 1, 16, "s20")
            a.salu("s_add_u32 s20, s20, 10240")
        a.salu("s_mul_i32 s20, s3, 25600")
        for j in range(3):
            a.bload("buffer_load_dwordx4", 44 + 4 * j, 4, 1, 12, "s20")
            a.salu("s_add_u32 s20, s20, 10240")
        a.wait(vm=0)
        a.salu("s_endpgm")
    return a.text()


CAP = 250 * 32 + 256
XSTG = 0
ESTG = 65536
SRC16 = 81920
DLS = SRC16 + CAP * 2
EOFF = DLS + CAP * 2
CNT = EOFF + CAP * 4
TC = CAP // 8
BASE = CNT + 512
PROG = CNT + 1024
FLAG = CNT + 1088
TBL = CNT + 1152
NZERO = 288
WUL = TBL + 2048
MAINLDS = WUL + 8192
WVL = DLS
WTMP = SRC16

TID = 0
T = list(range(2, 9))
VTB = 9
IDB = [10, 100]
SWZ = [14, 15, 1, 31]
EHALF = 16
VA = [17, 18, 19, 20]
VE, VPROG, VEM, VSRC, VEO = 21, 22, 23, 24, 25
PS, PE, DM, TOH = 26, 28, 29, 30
SD = 32
X = [40, 44, 48, 52]
EOP = 56
OH = [60, 64]
GG, HH = 68, 84
DEN = [104, 120]
NUM = [136, 152]
WB = {(ks, c): 168 + (ks * 2 + c) * 4 for ks in range(4) for c in range(2)}
GB = 200
WVB = [216, 220, 224, 228]
WC = [232, 236]
AT = {(s, c): 240 + (s * 2 + c) * 4 for s in range(2) for c in range(2)}
SRD_X, SRD_E, SRD_O, SRD_W = 12, 16, 20, 24
S_W, S_ROUND, S_MORE, S_C128 = 28, 29, 30, 31
S_I, S_N = 32, 33
S_MX, S_ME = 36, 37
S_M32 = 59
S_DONE, S_STEP = 34, 35
S_T = 48
PAIR = int(os.environ.get('PAIR', '1'))
SRT = os.environ.get('SRT', 'src')
SMASK = 66


def dma_issue(a, ps, pe):
    a.valu("v_mad_u32_u16", T[0], ps, f"s{S_C128}", SWZ[0])
    a.valu("v_mad_u32_u16", T[1], ps, f"s{S_C128}", SWZ[1], mods="op_sel:[1,0,0,0]")
    a.valu("v_mad_u32_u16", T[2], ps + 1, f"s{S_C128}", SWZ[2])
    a.valu("v_mad_u32_u16", T[3], ps + 1, f"s{S_C128}", SWZ[3], mods="op_sel:[1,0,0,0]")
    a.valu("v_and_or_b32", T[4], pe, f"s{S_M32}", EHALF)
    if NOMEM:
        for j in range(5):
            a.valu("v_and_b32", T[j], "0x3ff", T[j])
    for j in range(4):
        if j == 0:
            a.m0(f"s_mov_b32 m0, s{S_MX}")
        else:
            a.m0(f"s_add_u32 m0, s{S_MX}, {1024*j}")
        a.bload_lds(T[j], SRD_X)
    a.m0(f"s_mov_b32 m0, s{S_ME}")
    a.bload_lds(T[4], SRD_E, extra=" nt" if ENT else "")


def gen_main():
    a = Asm()
    def stamp(k):
        if INSTR:
            a.salu("s_memtime s[98:99]")
            a.wait(lgkm=0)
            a.salu(f"s_mov_b32 s{(44, 45, 100, 101, 60, 61)[k]}, s98")
    a.raw(".globl gp_main_kernel\n.p2align 8\n.type gp_main_kernel,@function\ngp_main_kernel:")
    a.salu("s_cmp_ge_u32 s2, 256")
    a.salu("s_cbranch_scc1 M_END")
    a.salu("s_and_b32 s3, s2, 7")
    a.salu("s_lshl_b32 s3, s3, 5")
    a.salu("s_lshr_b32 s2, s2, 3")
    a.salu("s_add_u32 s2, s2, s3")
    a.salu("s_load_dwordx2 s[10:11], s[0:1], 88")
    a.salu("s_load_dwordx4 s[4:7], s[0:1], 0")
    a.salu("s_load_dwordx2 s[8:9], s[0:1], 72")
    stamp(0)
    LANE, VQ, VM, VHH, VW, VR = 160, 161, 162, 163, 164, 165
    a.valu("v_and_b32", LANE, "63", TID)
    a.valu("v_lshrrev_b32", T[0], "6", TID)
    a.valu("v_readfirstlane_b32", f"s{S_W}", T[0], flags={'readlane': 1})
    a.valu("v_lshlrev_b32", VW, "4", LANE)
    a.valu("v_lshrrev_b32", VQ, "4", LANE)
    a.valu("v_lshrrev_b32", VR, "3", LANE)
    a.salu(f"s_mov_b32 s{S_ROUND}, 0")
    a.salu(f"s_mov_b32 s{S_DONE}, 0")
    a.salu(f"s_mov_b32 s{S_STEP}, 32")
    a.salu(f"s_lshl_b32 s{S_MX}, s{S_W}, 13")
    a.salu("s_mul_i32 s42, s2, 196")
    a.salu(f"s_mul_i32 s43, s{S_W}, 49")
    a.salu("s_lshr_b32 s43, s43, 1")
    a.salu("s_add_u32 s42, s42, s43")
    a.salu("s_lshl_b32 s46, s42, 7")
    a.valu("v_and_b32", T[2], "7", LANE)
    a.valu("v_and_b32", T[3], "1", VQ)
    a.valu("v_lshlrev_b32", T[3], "2", T[3])
    a.valu("v_xor_b32", T[3], T[2], T[3])
    a.valu("v_lshlrev_b32", SWZ[0], "4", T[3])
    for j in range(1, 4):
        a.valu("v_xor_b32", SWZ[j], str(16 * j), SWZ[0])
    a.wait(lgkm=0)
    srd(a, SRD_W, 10, WS_SIZE)
    srd(a, SRD_X, 4, N * 128)

    def xtile_dma(vr_):
        a.valu("v_and_b32", T[0], "2", vr_)
        a.valu("v_lshlrev_b32", T[0], "3", T[0])
        a.valu("v_and_b32", T[1], "1", vr_)
        a.valu("v_lshl_add_u32", T[0], T[1], "3", T[0])
        a.valu("v_lshrrev_b32", T[1], "2", vr_)
        a.valu("v_lshl_add_u32", T[0], T[1], "2", T[0])
        a.valu("v_lshlrev_b32", T[0], "7", T[0])
        for j in range(4):
            a.valu("v_add_u32", T[1 + j], T[0], SWZ[j])
        for j in range(4):
            a.salu(f"s_add_u32 s38, s46, {128 * j}")
            if j == 0:
                a.m0(f"s_mov_b32 m0, s{S_MX}")
            else:
                a.m0(f"s_add_u32 m0, s{S_MX}, {1024*j}")
            a.bload_lds(T[1 + j], SRD_X, "s38")

    REC = 40; RANK = 72; BS = 88
    REM = [32, 33, 34, 35]; ROF = [36, 37, 38, 39]
    a.label("M_ROUND")
    a.valu("v_lshrrev_b32", T[0], "3", TID)
    a.valu("v_lshlrev_b32", T[1], "2", T[0])
    a.salu("s_lshl_b32 s38, s2, 10")
    a.salu(f"s_add_u32 s38, s38, {WS_TAB}")
    for p_ in range(4):
        a.bload("buffer_load_dword", ROF[p_], 1, T[1], SRD_W, "s38", 256 * p_)
        a.bload("buffer_load_dword", REM[p_], 1, T[1], SRD_W, "s38", 1024 + 256 * p_)
    a.valu("v_lshrrev_b32", T[0], "3", TID)
    a.valu("v_and_b32", T[2], "7", TID)
    a.valu("v_lshlrev_b32", T[2], "1", T[2])
    a.valu("v_add_u32", T[6], f"s{S_DONE}", T[2])
    a.wait(vm=0)
    stamp(1)
    for p_ in range(4):
        a.valu("v_sub_u32", REM[p_], REM[p_], ROF[p_])
        if p_ == 3:
            a.valu("v_cmp_gt_u32", "vcc", str(250 - 192), T[0])
            a.valu("v_cndmask_b32", REM[p_], "0", REM[p_], "vcc")
        a.valu("v_subrev_u32", REM[p_], f"s{S_DONE}", REM[p_])
        if p_ == 0:
            a.valu("v_mov_b32", T[5], REM[p_])
        else:
            a.valu("v_max_i32", T[5], T[5], REM[p_])
        a.valu("v_min_i32", REM[p_], f"s{S_STEP}", REM[p_])
        a.valu("v_sub_u32", REM[p_], REM[p_], T[2])
        a.valu("v_add_u32", T[3], str(64 * p_), T[0])
        a.valu("v_mul_u32_u24", T[3], "3200", T[3])
        a.valu("v_add3_u32", T[3], T[3], ROF[p_], T[6])
        a.valu("v_lshlrev_b32", ROF[p_], "3", T[3])
    a.valu("v_cmp_lt_i32", "s[40:41]", f"s{S_STEP}", T[5])
    def recs():
        for p_ in range(4):
            for c_ in range(2):
                for h_ in range(2):
                    yield (p_ * 2 + c_) * 2 + h_, p_, 16 * c_ + h_
    for i, p_, K in recs():
        a.valu("v_cmp_lt_i32", f"s[{SMASK+2*i}:{SMASK+2*i+1}]", str(K), REM[p_])
    def mask(i, skip):
        a.salu(f"s_mov_b64 exec, s[{SMASK+2*i}:{SMASK+2*i+1}]")
        a.salu(f"s_cbranch_execz {skip}")
    for p_ in range(4):
        for c_ in range(2):
            lab = f"M_LD_{p_}{c_}"
            mask((p_ * 2 + c_) * 2, lab)
            a.bload("buffer_load_dwordx4", REC + (p_ * 2 + c_) * 4, 4, ROF[p_], SRD_W, "0", 128 * c_)
            a.label(lab)
    a.salu("s_mov_b64 exec, -1")
    a.salu(f"s_cmp_eq_u32 s{S_ROUND}, 0")
    a.salu("s_cbranch_scc0 M_NOSETUP")
    for kk in range(5):
        a.salu(f"s_add_u32 s39, s{S_W}, {8 * kk}")
        if kk == 4:
            a.salu("s_cmp_ge_u32 s39, 34")
            a.salu("s_cbranch_scc1 M_WL_SKIP")
        if kk == 3:
            a.salu("s_lshl_b32 s38, s39, 10")
            a.m0(f"s_add_u32 m0, s38, {WUL - 24576}")
        elif kk == 2:
            a.salu("s_lshl_b32 s38, s39, 10")
            a.m0(f"s_add_u32 m0, s38, {WVL - 16384}")
        else:
            a.salu(f"s_sub_u32 s38, s39, {8 if kk == 4 else 0}")
            a.salu("s_lshr_b32 s47, s38, 2")
            a.salu("s_lshl_b32 s47, s47, 13")
            a.salu("s_and_b32 s38, s38, 3")
            a.salu("s_lshl_b32 s38, s38, 10")
            a.salu("s_add_u32 s38, s38, s47")
            a.m0("s_add_u32 m0, s38, 4096")
        a.salu("s_lshl_b32 s39, s39, 10")
        a.salu(f"s_add_u32 s39, s39, {WS_WT}")
        a.bload_lds(VW, SRD_W, "s39")
    a.label("M_WL_SKIP")
    xtile_dma(VR)
    srd(a, SRD_E, 6, E * 32)
    srd(a, SRD_O, 8, N * 128)
    a.valu("v_and_b32", VM, "31", LANE)
    a.valu("v_lshrrev_b32", VHH, "5", LANE)
    a.valu("v_xor_b32", T[2], LANE, VQ)
    a.valu("v_and_b32", T[2], "1", T[2])
    a.valu("v_lshlrev_b32", EHALF, "4", T[2])
    a.valu("v_lshlrev_b32", VTB, "5", VHH)
    a.valu("v_add_u32", VTB, str(TBL), VTB)
    a.salu(f"s_mov_b32 s{S_C128}, 128")
    a.salu(f"s_mov_b32 s{S_M32}, 0xffffffe0")
    a.salu("s_mov_b32 s62, 0xbfb8aa3b")
    a.salu("s_mov_b32 s63, 0xbfb8aa3b")
    a.salu("s_mov_b32 s64, 1.0")
    a.salu("s_mov_b32 s65, 1.0")
    a.salu(f"s_lshl_b32 s{S_ME}, s{S_W}, 11")
    a.salu(f"s_add_u32 s{S_ME}, s{S_ME}, {ESTG}")
    a.salu(f"s_mov_b32 s52, {SRC16}")
    a.salu(f"s_mov_b32 s53, {DLS}")
    a.salu(f"s_mov_b32 s54, {EOFF}")
    a.valu("v_and_b32", T[0], "3", VM)
    a.valu("v_lshrrev_b32", T[1], "4", VM)
    a.valu("v_and_b32", T[2], "4", VM)
    a.valu("v_lshl_add_u32", T[2], T[0], "3", T[2])
    a.valu("v_lshl_add_u32", T[2], T[1], "1", T[2])
    a.valu("v_bfe_u32", T[3], VM, "3", "1")
    a.valu("v_add_u32", T[2], T[2], T[3])
    a.valu("v_lshl_add_u32", T[0], T[1], "2", T[0])
    a.valu("v_xor_b32", T[0], T[0], VHH)
    a.valu("v_lshlrev_b32", T[0], "4", T[0])
    a.valu("v_lshl_add_u32", T[0], T[2], "7", T[0])
    a.valu("v_add_u32", VA[0], f"s{S_MX}", T[0])
    for ks in range(1, 4):
        a.valu("v_xor_b32", VA[ks], str(32 * ks), VA[0])
    a.valu("v_xor_b32", T[0], T[3], VHH)
    a.valu("v_lshlrev_b32", T[0], "4", T[0])
    a.valu("v_lshl_add_u32", T[0], VM, "5", T[0])
    a.valu("v_add_u32", VE, f"s{S_ME}", T[0])
    a.valu("v_lshrrev_b32", T[0], "4", TID)
    a.valu("v_and_b32", T[1], "6", TID)
    a.valu("v_lshlrev_b32", T[1], "2", T[1])
    a.valu("v_bfe_u32", T[2], TID, "3", "1")
    a.valu("v_lshl_add_u32", T[1], T[2], "2", T[1])
    a.valu("v_and_b32", T[2], "1", TID)
    a.valu("v_lshl_add_u32", T[1], T[2], "1", T[1])
    a.valu("v_mov_b32", T[3], "0x3f80")
    a.valu("v_mov_b32", T[4], "0x3f800000")
    a.valu("v_cmp_eq_u32", "vcc", T[0], T[1])
    a.valu("v_cndmask_b32", T[3], "0", T[3], "vcc")
    a.valu("v_add_u32", T[1], "1", T[1])
    a.valu("v_cmp_eq_u32", "vcc", T[0], T[1])
    a.valu("v_cndmask_b32", T[4], "0", T[4], "vcc")
    a.valu("v_or_b32", T[3], T[3], T[4])
    a.valu("v_cmp_eq_u32", "vcc", "31", T[0])
    a.valu("v_mov_b32", T[4], "0")
    a.valu("v_cndmask_b32", T[3], T[3], T[4], "vcc")
    a.valu("v_lshlrev_b32", T[5], "2", TID)
    a.valu("v_add_u32", T[6], str(TBL), T[5])
    a.ds_write("ds_write_b32", T[6], T[3])
    a.valu("v_add_u32", T[5], str(CNT), T[5])
    a.valu("v_cmp_gt_u32", "vcc", str(NZERO), TID)
    a.salu("s_and_saveexec_b64 s[42:43], vcc")
    a.ds_write("ds_write_b32", T[5], T[4])
    a.salu("s_mov_b64 exec, s[42:43]")
    a.label("M_NOSETUP")
    a.valu("v_mov_b32", T[6], "1")
    a.salu(f"s_mov_b32 s38, {CNT}")
    a.salu(f"s_mov_b32 s47, {4 * TC}")
    a.valu("v_and_b32", T[5], "15", TID)
    a.valu("v_lshl_add_u32", T[5], T[5], "2", "s38")
    a.salu(f"s_cmp_eq_u32 s{S_ROUND}, 0")
    a.salu("s_cbranch_scc1 M_RW8")
    a.wait(vm=0)
    a.label("M_RW8")
    a.wait(vm=8, lgkm=0)
    a.barrier()
    stamp(2)
    for i, p_, K in recs():
        lab = f"M_AT_{i}"
        mask(i, lab)
        if SRT == 'src':
            a.valu("v_bfe_u32", T[0], REC + 2 * i, "12", "7")
            a.valu("v_lshl_add_u32", BS + i, T[0], "2", "s38")
        elif SRT == 'eid':
            a.valu("v_bfe_u32", T[0], REC + 2 * i, "16", "3")
            a.valu("v_lshrrev_b32", T[1], "21", REC + 2 * i + 1)
            a.valu("v_lshl_add_u32", T[0], T[0], "4", T[1])
            a.valu("v_lshl_add_u32", BS + i, T[0], "2", "s38")
        else:
            a.valu("v_bfe_u32", T[0], REC + 2 * i, "16", "3")
            a.valu("v_lshl_add_u32", BS + i, T[0], "6", T[5])
        a.ds_add_rtn(RANK + i, BS + i, T[6])
        a.label(lab)
    a.salu("s_mov_b64 exec, s[40:41]")
    a.salu("s_cbranch_execz M_AT_DONE")
    a.valu("v_mov_b32", T[0], str(FLAG))
    a.ds_write("ds_write_b32", T[0], T[6])
    a.label("M_AT_DONE")
    a.salu("s_mov_b64 exec, -1")
    a.wait(vm=0, lgkm=0)
    a.barrier()
    WA = {(ks, c): 112 + (ks * 2 + c) * 4 for ks in range(4) for c in range(2)}
    XT = [144, 148, 152, 156]
    a.salu(f"s_cmp_eq_u32 s{S_ROUND}, 0")
    a.salu("s_cbranch_scc0 M_NOWR")
    a.valu("v_and_b32", T[0], "63", TID)
    a.valu("v_lshlrev_b32", T[0], "4", T[0])
    def slot(k):
        return (k >> 2) * 8192 + 4096 + (k & 3) * 1024
    for dst, mb in ((WA, 0), (WB, 8)):
        for ks in range(4):
            for c in range(2):
                a.ds_read("ds_read_b128", dst[(ks, c)], 4, T[0], off=slot(mb + ks * 2 + c))
    for c in range(2):
        a.ds_read("ds_read_b128", WC[c], 4, T[0], off=slot(24 + c))
    a.label("M_NOWR")
    a.valu("v_and_b32", T[0], "63", TID)
    a.valu("v_lshl_add_u32", T[0], T[0], "2", "s38")
    a.ds_read("ds_read_b32", T[1], 1, T[0])
    a.ds_read("ds_read_b32", T[2], 1, T[0], off=256)
    a.valu("v_mov_b32", T[5], str(FLAG))
    a.ds_read("ds_read_b32", T[5], 1, T[5])
    a.valu("v_bfe_u32", T[6], TID, "4", "2")
    a.valu("v_mul_u32_u24", T[6], str(TC), T[6])
    a.wait(lgkm=0)
    a.valu("v_readfirstlane_b32", f"s{S_MORE}", T[5], flags={'readlane': 1})
    a.valu("v_mov_b32", T[3], T[1])
    a.valu("v_mov_b32", T[4], T[2])
    for sh in (1, 2, 4, 8):
        a.valu("v_add_u32_dpp", T[3], T[3], T[3], mods=f"row_shr:{sh} row_mask:0xf bank_mask:0xf bound_ctrl:0", flags={'dpp': 1})
        a.valu("v_add_u32_dpp", T[4], T[4], T[4], mods=f"row_shr:{sh} row_mask:0xf bank_mask:0xf bound_ctrl:0", flags={'dpp': 1})
    a.valu("v_max_u32", T[5], T[3], T[4])
    a.valu("v_cmp_lt_u32", "vcc", str(TC - 32), T[5])
    a.salu("s_cbranch_vccnz M_OVERFLOW")
    a.valu("v_sub_u32", T[1], T[3], T[1])
    a.valu("v_sub_u32", T[2], T[4], T[2])
    a.valu("v_add_u32", T[1], T[1], T[6])
    a.valu("v_add3_u32", T[2], T[2], T[6], "s47")
    a.ds_write("ds_write_b32", T[0], T[1], off=BASE - CNT)
    a.ds_write("ds_write_b32", T[0], T[2], off=BASE - CNT + 256)
    a.salu(f"s_and_b32 s55, s{S_ROUND}, 0x7fffffff")
    a.salu("s_cmp_eq_u32 s55, 0")
    a.salu("s_cbranch_scc0 M_NOASSIGN")
    a.salu(f"s_mov_b32 s{S_T}, s{S_W}")
    if PAIR:
        a.valu("v_and_b32", T[5], "15", TID)
        a.valu("v_cmp_eq_u32", "vcc", "15", T[5])
        a.valu("v_bfe_u32", T[5], TID, "4", "2")
        a.valu("v_lshlrev_b32", T[5], "2", T[5])
        a.valu("v_add_u32", T[5], str(FLAG + 16), T[5])
        a.salu("s_mov_b64 exec, vcc")
        a.ds_write("ds_write_b32", T[5], T[3])
        a.ds_write("ds_write_b32", T[5], T[4], off=16)
        a.salu("s_mov_b64 exec, -1")
        a.valu("v_and_b32", T[5], "7", TID)
        a.valu("v_lshlrev_b32", T[6], "2", T[5])
        a.valu("v_add_u32", T[6], str(FLAG + 16), T[6])
        a.wait(lgkm=0)
        a.ds_read("ds_read_b32", T[6], 1, T[6])
        a.wait(lgkm=0)
        a.valu("v_lshl_or_b32", T[6], T[6], "3", T[5])
        a.valu("v_mov_b32", T[5], "0")
        for j in range(8):
            a.valu("v_readlane_b32", "s55", T[6], str(j), flags={'readlane': 1})
            a.valu("v_cmp_gt_u32", "vcc", "s55", T[6])
            a.valu("v_addc_co_u32", T[5], "vcc", "0", T[5], "vcc", sw=[106, 107])
        a.salu(f"s_sub_u32 s55, 11, s{S_W}")
        a.salu(f"s_cmp_lt_u32 s{S_W}, 4")
        a.salu(f"s_cselect_b32 s55, s{S_W}, s55")
        a.valu("v_cmp_eq_u32", "vcc", "s55", T[5])
        a.salu(f"s_ff1_i32_b64 s{S_T}, vcc")
    a.salu("s_mul_i32 s42, s2, 196")
    a.salu(f"s_mul_i32 s43, s{S_T}, 49")
    a.salu("s_lshr_b32 s43, s43, 1")
    a.salu("s_add_u32 s42, s42, s43")
    a.salu("s_lshl_b32 s46, s42, 7")
    a.salu(f"s_sub_u32 s55, s{S_T}, s{S_W}")
    a.salu("s_lshl_b32 s55, s55, 13")
    for ks in range(4):
        a.valu("v_add_u32", T[5], "s55", VA[ks])
        a.ds_read("ds_read_b128", XT[ks], 4, T[5])
    a.label("M_NOASSIGN")
    a.salu(f"s_and_b32 s55, s{S_T}, 3")
    a.salu("s_lshl_b32 s55, s55, 4")
    a.salu("s_add_u32 s55, s55, 15")
    a.valu("v_readlane_b32", "s51", T[3], "s55", flags={'readlane': 1})
    a.valu("v_readlane_b32", "s56", T[4], "s55", flags={'readlane': 1})
    a.salu(f"s_cmp_ge_u32 s{S_T}, 4")
    a.salu("s_cselect_b32 s51, s56, s51")
    a.salu("s_add_u32 s50, s51, 31")
    a.salu("s_and_b32 s50, s50, 0xffffffe0")
    a.salu(f"s_mul_i32 s49, s{S_T}, {TC}")
    a.wait(lgkm=0)
    for i, p_, K in recs():
        lab = f"M_BS_{i}"
        mask(i, lab)
        a.ds_read("ds_read_b32", BS + i, 1, BS + i, off=BASE - CNT)
        a.label(lab)
    a.salu("s_mov_b64 exec, -1")

    def place(pos, w0, w1, dl):
        a.valu("v_lshl_add_u32", T[4], pos, "1", "s52")
        a.ds_write("ds_write_b16", T[4], w0)
        a.valu("v_lshl_add_u32", T[6], pos, "2", "s54")
        a.ds_write("ds_write_b32", T[6], w1)

    a.valu("v_and_b32", T[3], "63", TID)
    a.salu("s_sub_u32 s55, s50, s51")
    a.salu("s_add_u32 s56, s49, s51")
    a.valu("v_cmp_gt_u32", "vcc", "s55", T[3])
    a.valu("v_add_u32", T[3], "s56", T[3])
    a.valu("v_mov_b32", T[0], "0")
    a.valu("v_mov_b32", T[1], "31")
    a.salu("s_mov_b64 exec, vcc")
    place(T[3], T[0], T[1], T[1])
    a.salu("s_mov_b64 exec, -1")
    a.wait(lgkm=0)
    for i, p_, K in recs():
        lab = f"M_PL_{i}"
        mask(i, lab)
        a.valu("v_add_u32", T[3], BS + i, RANK + i)
        place(T[3], REC + 2 * i, REC + 2 * i + 1, T[5])
        a.label(lab)
    a.salu("s_mov_b64 exec, -1")
    a.salu(f"s_lshr_b32 s{S_N}, s50, 5")
    a.salu(f"s_mov_b32 s{S_I}, 0")
    a.valu("v_and_b32", T[1], "63", TID)
    a.salu("s_lshl_b32 s55, s49, 1")
    a.salu("s_add_u32 s56, s55, s52")
    a.valu("v_lshrrev_b32", T[0], "3", T[1])
    a.valu("v_lshl_add_u32", VSRC, T[0], "3", "s56")
    a.salu("s_lshl_b32 s56, s49, 2")
    a.salu("s_add_u32 s56, s56, s54")
    def pi_of(dst, p):
        a.valu("v_and_b32", dst, "3", p)
        a.valu("v_lshrrev_b32", T[5], "1", p)
        a.valu("v_and_or_b32", dst, T[5], "12", dst)
        a.valu("v_lshlrev_b32", T[5], "2", p)
        a.valu("v_and_or_b32", dst, T[5], "16", dst)
    a.valu("v_lshrrev_b32", T[0], "1", T[1])
    pi_of(T[2], T[0])
    a.valu("v_lshl_add_u32", VEO, T[2], "2", "s56")
    a.valu("v_and_b32", T[0], "31", T[1])
    pi_of(T[2], T[0])
    a.valu("v_lshl_add_u32", VEM, T[2], "2", "s56")
    a.wait(lgkm=0)
    a.barrier()
    stamp(3)
    a.ds_read("ds_read_b64", PS, 2, VSRC)
    a.ds_read("ds_read_b32", PE, 1, VEO)
    a.ds_read("ds_read_b64", SD, 2, VSRC, off=64)
    a.ds_read("ds_read_b32", SD + 2, 1, VEO, off=128)
    a.ds_read("ds_read_b32", DM, 1, VEM)
    a.valu("v_and_b32", T[0], "31", TID)
    a.valu("v_lshl_add_u32", T[0], T[0], "6", VTB)
    a.ds_read("ds_read_b128", IDB[0], 4, T[0])
    a.ds_read("ds_read_b128", IDB[1], 4, T[0], off=16)
    a.wait(lgkm=0)
    a.salu(f"s_cmp_eq_u32 s{S_N}, 0")
    a.salu("s_cbranch_scc1 M_PRE_DONE")
    dma_issue(a, PS, PE)
    a.salu(f"s_cmp_eq_u32 s{S_N}, 1")
    a.salu("s_cbranch_scc1 M_PRE_DONE")
    a.salu(f"s_xor_b32 s{S_MX}, s{S_MX}, 4096")
    a.salu(f"s_xor_b32 s{S_ME}, s{S_ME}, 1024")
    dma_issue(a, SD, SD + 2)
    a.salu(f"s_xor_b32 s{S_MX}, s{S_MX}, 4096")
    a.salu(f"s_xor_b32 s{S_ME}, s{S_ME}, 1024")
    a.label("M_PRE_DONE")
    a.valu("v_add_u32", VSRC, "128", VSRC)
    a.valu("v_add_u32", VEO, "256", VEO)
    a.valu("v_add_u32", VEM, "128", VEM)
    a.salu(f"s_and_b32 s38, s{S_ROUND}, 0x7fffffff")
    a.salu("s_cmp_eq_u32 s38, 0")
    a.salu("s_cbranch_scc0 M_NOAT")
    for c, o in ((0, GG), (1, HH)):
        for ks in range(4):
            a.mfma32(o, XT[ks], WA[(ks, c)], None if ks == 0 else o)
    for c, o in ((0, GG), (1, HH)):
        if FOLD:
            for k in range(16):
                a.valu("v_mul_f32", o + k, "s62", o + k)
        for s in range(2):
            for k in range(4):
                a.valu("v_cvt_pk_bf16_f32", AT[(s, c)] + k, o + 8 * s + 2 * k, o + 8 * s + 2 * k + 1)
    for r in range(104, 168):
        a.valu("v_mov_b32", r, "0")
    a.label("M_NOAT")
    a.salu(f"s_lshl_b32 s57, s{S_W}, 2")
    a.salu(f"s_add_u32 s57, s57, {PROG}")
    a.valu("v_mov_b32", VPROG, "s57")
    a.fence()
    a.salu(f"s_cmp_ge_u32 s{S_I}, s{S_N}")
    a.salu("s_cbranch_scc1 M_LOOP_END")

    def operand_reads(tag):
        a.salu(f"s_add_u32 s39, s38, 1")
        a.salu(f"s_cmp_lt_u32 s39, s{S_N}")
        a.salu(f"s_cbranch_scc1 M_W5{tag}")
        a.wait(vm=0)
        a.salu(f"s_branch M_W0{tag}")
        a.label(f"M_W5{tag}")
        a.wait(vm=5)
        a.label(f"M_W0{tag}")
        a.valu("v_and_b32", T[0], "31", DM)
        a.valu("v_lshl_add_u32", TOH, T[0], "6", VTB)
        a.ds_read("ds_read_b128", OH[0], 4, TOH)
        a.ds_read("ds_read_b128", OH[1], 4, TOH, off=16)
        for ks in range(4):
            a.ds_read("ds_read_b128", X[ks], 4, VA[ks])
        a.ds_read("ds_read_b128", EOP, 4, VE)
        a.ds_read("ds_read_b64", PS, 2, VSRC)
        a.ds_read("ds_read_b32", PE, 1, VEO)
        a.ds_read("ds_read_b32", DM, 1, VEM)
        if BAL:
            a.salu(f"s_sub_u32 s57, s{S_N}, s38")
            a.valu("v_mov_b32", T[1], "s57")
            a.valu("v_xor_b32", T[2], "16", VPROG)
            a.ds_write("ds_write_b32", VPROG, T[1])
            a.ds_read("ds_read_b32", T[5], 1, T[2])
        for ks in range(4):
            a.valu("v_xor_b32", VA[ks], "0x1000", VA[ks])
        a.valu("v_xor_b32", VE, "0x400", VE)
        a.valu("v_add_u32", VSRC, "64", VSRC)
        a.valu("v_add_u32", VEO, "0x80", VEO)
        a.valu("v_add_u32", VEM, "0x80", VEM)

    VWV = TOH
    def wv_reads(c):
        a.valu("v_and_b32", T[6], "63", TID)
        a.valu("v_lshlrev_b32", T[6], "4", T[6])
        a.valu("v_add_u32", T[6], str(WVL), T[6])
        for ks in range(4):
            a.ds_read("ds_read_b128", WVB[ks], 4, T[6], off=(ks * 2 + c) * 1024)

    def g_mfmas(c):
        g = GG if c == 0 else GB
        l = [lambda ks=ks: a.mfma32(g, X[ks], WB[(ks, c)], None if ks == 0 else g) for ks in range(4)]
        l.append(lambda: a.mfma32(g, EOP, WC[c], g))
        l.append(lambda: a.mfma32(g, OH[0], AT[(0, c)], g))
        l.append(lambda: a.mfma32(g, OH[1], AT[(1, c)], g))
        return l
    def h_mfmas():
        return [lambda ks=ks: a.mfma32(HH, X[ks], WVB[ks], None if ks == 0 else HH) for ks in range(4)]
    def seg_mfmas(c):
        g = GG if c == 0 else GB
        return [lambda: a.mfma32(DEN[c], SD, g, DEN[c]), lambda: a.mfma32(DEN[c], SD + 4, g + 4, DEN[c]),
                lambda: a.mfma32(NUM[c], SD, HH, NUM[c]), lambda: a.mfma32(NUM[c], SD + 4, HH + 4, NUM[c])]
    def valu_ops(c):
        g = GG if c == 0 else GB
        v = []
        if not FOLD:
            v += [lambda k=k: a.valu("v_mul_f32", g + k, "s62", g + k) for k in range(16)]
        v += [lambda k=k: a.valu("v_exp_f32", g + k, g + k, trans=True) for k in range(16)]
        v += [lambda k=k: a.valu("v_add_f32", g + k, "1.0", g + k) for k in range(16)]
        v += [lambda k=k: a.valu("v_rcp_f32", g + k, g + k, trans=True) for k in range(16)]
        v += [lambda k=k: a.valu("v_mul_f32", HH + k, g + k, HH + k) for k in range(16)]
        v += [lambda k=k: a.valu("v_cvt_pk_bf16_f32", g + k, g + 2 * k, g + 2 * k + 1) for k in range(8)]
        v += [lambda k=k: a.valu("v_cvt_pk_bf16_f32", HH + k, HH + 2 * k, HH + 2 * k + 1) for k in range(8)]
        return v
    if NOCOMP:
        _vo = valu_ops
        valu_ops = lambda c: [(lambda: None)] * len(_vo(c))
        g_mfmas = lambda c: [(lambda: None)] * 7
        h_mfmas = lambda: [(lambda: None)] * 4
        seg_mfmas = lambda c: [(lambda: None)] * 4
    def run_stage(v, events):
        for i in range(len(v) + 1):
            for e in events.get(i, []):
                e()
            if i < len(v):
                v[i]()

    a.salu(f"s_mov_b32 s38, s{S_I}")
    operand_reads("P")
    wv_reads(0)
    for k in range(8):
        a.valu("v_mov_b32", SD + k, "0")
        a.valu("v_mov_b32", GB + k, "0")
        a.valu("v_mov_b32", HH + k, "0")
    a.wait(lgkm=0)
    for m in g_mfmas(0):
        m()
    a.fence()

    a.label("M_GROUP")
    def prio():
        if BAL:
            a.valu("v_readfirstlane_b32", "s58", T[5], flags={'readlane': 1})
            a.salu("s_cmp_ge_u32 s57, s58")
            a.salu("s_cbranch_scc1 M_PHI")
            a.salu("s_setprio 0")
            a.salu("s_branch M_PDONE")
            a.label("M_PHI")
            a.salu("s_setprio 1")
            a.label("M_PDONE")
    def dma_block():
        a.salu(f"s_add_u32 s38, s{S_I}, 2")
        a.salu(f"s_cmp_lt_u32 s38, s{S_N}")
        a.salu("s_cbranch_scc0 M_NODMA")
        dma_issue(a, PS, PE)
        a.salu("s_branch M_DMAD")
        a.label("M_NODMA")
        a.salu(f"s_cmp_eq_u32 s38, s{S_N}")
        a.salu("s_cbranch_scc0 M_DMAD")
        a.salu(f"s_cmp_eq_u32 s{S_MORE}, 0")
        a.salu("s_cbranch_scc0 M_DMAD")
        a.valu("v_bfe_u32", T[6], TID, "3", "3")
        xtile_dma(T[6])
        a.label("M_DMAD")
        a.salu(f"s_xor_b32 s{S_MX}, s{S_MX}, 4096")
        a.salu(f"s_xor_b32 s{S_ME}, s{S_ME}, 1024")
    def cvt_s():
        for k in range(8):
            a.valu("v_cvt_pk_bf16_f32", SD + k, HH + 2 * k, HH + 2 * k + 1)
    def next_ops():
        a.salu(f"s_add_u32 s38, s{S_I}, 1")
        a.salu(f"s_cmp_lt_u32 s38, s{S_N}")
        a.salu("s_cbranch_scc0 M_NOPF")
        operand_reads("L")
        a.label("M_NOPF")
    SCH = os.environ.get("SCH", "0")
    P = {
      "0": dict(a_seg=(0, 3, 6, 10), a_s=(13, 16), a_dma=20, a_cvt=30, a_h=(31, 35, 38, 41), a_wv=43, a_g=(45, 49, 53, 57, 61, 65, 70),
                b_seg=(0, 2, 5, 7), b_h=(10, 13, 16, 20), b_rd=21, b_g=(38, 42, 46, 50, 55, 59, 63)),
      "1": dict(a_seg=(0, 2, 4, 6), a_s=(8, 10), a_dma=12, a_cvt=24, a_h=(26, 29, 32, 35), a_wv=36, a_g=(38, 43, 48, 53, 58, 63, 68),
                b_seg=(0, 2, 4, 6), b_h=(8, 10, 12, 14), b_rd=15, b_g=(40, 44, 48, 52, 56, 60, 64)),
      "2": dict(a_seg=(0, 4, 8, 12), a_s=(16, 20), a_dma=22, a_cvt=34, a_h=(35, 38, 41, 44), a_wv=45, a_g=(47, 51, 55, 59, 63, 67, 70),
                b_seg=(0, 3, 6, 9), b_h=(12, 15, 18, 21), b_rd=22, b_g=(44, 48, 52, 56, 60, 64, 68)),
      "3": dict(a_seg=(0, 2, 4, 6), a_s=(8, 10), a_dma=12, a_cvt=24, a_h=(25, 27, 29, 31), a_wv=32, a_g=(34, 39, 44, 49, 54, 59, 64),
                b_seg=(0, 2, 4, 6), b_h=(8, 10, 12, 14), b_rd=15, b_g=(34, 39, 44, 49, 54, 59, 64)),
    }[SCH]
    ev = {}
    def at(pos, f):
        ev.setdefault(pos, []).append(f)
    at(0, prio)
    sg = seg_mfmas(1)
    for k in range(4):
        at(P['a_seg'][k], sg[k])
    at(P['a_s'][0], lambda: a.mfma32(HH, OH[0], IDB[0], None))
    at(P['a_s'][1], lambda: a.mfma32(HH, OH[1], IDB[1], HH))
    at(P['a_dma'], dma_block)
    at(P['a_cvt'], cvt_s)
    hm = h_mfmas()
    for k in range(4):
        at(P['a_h'][k], hm[k])
    at(P['a_wv'], lambda: wv_reads(1))
    gm = g_mfmas(1)
    for k in range(7):
        at(P['a_g'][k], gm[k])
    run_stage(valu_ops(0), ev)
    ev = {}
    sg = seg_mfmas(0)
    for k in range(4):
        at(P['b_seg'][k], sg[k])
    at(P['b_h'][0], lambda: a.wait(lgkm=0))
    hm = h_mfmas()
    for k in range(4):
        at(P['b_h'][k], hm[k])
    at(P['b_rd'], next_ops)
    at(P['b_rd'], lambda: wv_reads(0))
    at(P['b_g'][0], lambda: a.wait(lgkm=0))
    gm = g_mfmas(0)
    for k in range(7):
        at(P['b_g'][k], gm[k])
    run_stage(valu_ops(1), ev)
    a.salu(f"s_add_u32 s{S_I}, s{S_I}, 1")
    a.salu(f"s_cmp_lt_u32 s{S_I}, s{S_N}")
    a.salu("s_cbranch_scc1 M_GROUP")
    for m in seg_mfmas(1):
        m()

    a.label("M_LOOP_END")
    a.fence()
    if BAL:
        a.valu("v_mov_b32", T[1], "0")
        a.ds_write("ds_write_b32", VPROG, T[1])
        a.salu("s_setprio 0")
    stamp(4)
    a.salu(f"s_cmp_eq_u32 s{S_MORE}, 0")
    a.salu("s_cbranch_scc1 M_EPI")
    a.wait(vm=0, lgkm=0)
    a.barrier()
    a.valu("v_mov_b32", T[4], "0")
    a.valu("v_lshlrev_b32", T[5], "2", TID)
    a.valu("v_add_u32", T[5], str(CNT), T[5])
    a.valu("v_cmp_gt_u32", "vcc", str(NZERO), TID)
    a.salu("s_and_saveexec_b64 s[40:41], vcc")
    a.ds_write("ds_write_b32", T[5], T[4])
    a.salu("s_mov_b64 exec, s[40:41]")
    a.salu(f"s_add_u32 s{S_ROUND}, s{S_ROUND}, 1")
    a.salu(f"s_add_u32 s{S_DONE}, s{S_DONE}, s{S_STEP}")
    a.salu(f"s_and_b32 s38, s{S_N}, 1")
    a.salu("s_cmp_eq_u32 s38, 0")
    a.salu("s_cbranch_scc1 M_PAR_OK")
    for ks in range(4):
        a.valu("v_xor_b32", VA[ks], "0x1000", VA[ks])
    a.valu("v_xor_b32", VE, "0x400", VE)
    a.salu(f"s_xor_b32 s{S_MX}, s{S_MX}, 4096")
    a.salu(f"s_xor_b32 s{S_ME}, s{S_ME}, 1024")
    a.label("M_PAR_OK")
    a.wait(lgkm=0)
    a.fence()
    a.salu("s_branch M_ROUND")

    a.label("M_OVERFLOW")
    a.wait(vm=0, lgkm=0)
    a.barrier()
    a.valu("v_mov_b32", T[4], "0")
    a.valu("v_lshlrev_b32", T[5], "2", TID)
    a.valu("v_add_u32", T[5], str(CNT), T[5])
    a.valu("v_cmp_gt_u32", "vcc", str(NZERO), TID)
    a.salu("s_and_saveexec_b64 s[40:41], vcc")
    a.ds_write("ds_write_b32", T[5], T[4])
    a.salu("s_mov_b64 exec, s[40:41]")
    a.salu(f"s_mov_b32 s{S_STEP}, 4")
    a.salu(f"s_cmp_eq_u32 s{S_ROUND}, 0")
    a.salu("s_cbranch_scc0 M_OV2")
    a.salu(f"s_mov_b32 s{S_ROUND}, 0x80000000")
    a.label("M_OV2")
    a.wait(lgkm=0)
    a.fence()
    a.salu("s_branch M_ROUND")
    a.label("M_EPI")
    WU = {(ks, c): 40 + (ks * 2 + c) * 4 for ks in range(4) for c in range(2)}
    XE = [72, 76, 80, 84]
    XR = [88, 92, 96, 100]
    a.salu(f"s_cmp_ge_u32 s{S_N}, 2")
    a.salu("s_cbranch_scc1 M_EPI_HAVE")
    a.valu("v_bfe_u32", T[6], TID, "3", "3")
    xtile_dma(T[6])
    a.label("M_EPI_HAVE")
    LANE2, VM2, VHH2 = T[0], T[1], T[2]
    a.valu("v_and_b32", LANE2, "63", TID)
    a.valu("v_and_b32", VM2, "31", LANE2)
    a.valu("v_lshrrev_b32", VHH2, "5", LANE2)
    a.valu("v_lshlrev_b32", T[3], "4", LANE2)
    a.valu("v_add_u32", T[4], str(WUL), T[3])
    for ks in range(4):
        for c in range(2):
            a.ds_read("ds_read_b128", WU[(ks, c)], 4, T[4], off=(ks * 2 + c) * 1024)
    a.valu("v_lshrrev_b32", T[4], "3", LANE2)
    a.valu("v_and_b32", T[5], "3", T[4])
    a.valu("v_and_b32", T[6], "4", T[4])
    a.valu("v_lshl_add_u32", T[6], T[5], "3", T[6])
    a.valu("v_and_b32", T[4], "7", LANE2)
    a.valu("v_xor_b32", T[4], T[4], T[5])
    a.valu("v_lshlrev_b32", T[4], "4", T[4])
    a.valu("v_lshl_add_u32", T[4], T[6], "7", T[4])
    a.valu("v_add_u32", T[4], f"s{S_MX}", T[4])
    a.valu("v_xor_b32", T[5], "64", T[4])
    for c in range(2):
        for r in range(16):
            a.valu("v_add_f32", DEN[c] + r, "0x358637bd", DEN[c] + r)
    for c in range(2):
        for r in range(16):
            a.valu("v_rcp_f32", DEN[c] + r, DEN[c] + r, trans=True)
    for c in range(2):
        for r in range(16):
            a.valu("v_mul_f32", NUM[c] + r, NUM[c] + r, DEN[c] + r)
    a.wait(vm=0)
    for ks in range(4):
        a.ds_read("ds_read_b128", XE[ks], 4, VA[ks])
    a.ds_read("ds_read_b128", XR[0], 4, T[4])
    a.ds_read("ds_read_b128", XR[1], 4, T[4], off=128)
    a.ds_read("ds_read_b128", XR[2], 4, T[5], off=256)
    a.ds_read("ds_read_b128", XR[3], 4, T[5], off=384)
    a.wait(lgkm=0)
    for c in range(2):
        for ks in range(4):
            a.mfma32(NUM[c], XE[ks], WU[(ks, c)], NUM[c])
    a.salu(f"s_lshl_b32 s38, s{S_W}, 13")
    a.valu("v_lshlrev_b32", T[4], "10", VHH2)
    a.valu("v_lshl_add_u32", T[4], VM2, "2", T[4])
    a.valu("v_add_u32", T[4], "s38", T[4])
    a.valu("v_lshlrev_b32", T[5], "5", LANE2)
    a.valu("v_add_u32", T[5], "s38", T[5])
    for c in range(2):
        for r in range(16):
            if (r >> 2) == 3 and (r & 3) >= 1:
                continue
            a.valu("v_max_f32", NUM[c] + r, "0", NUM[c] + r)
            a.ds_write("ds_write_b32", T[4], NUM[c] + r, off=(8 * (r >> 2) + (r & 3)) * 256 + c * 128)
    a.wait(lgkm=0)
    ZR = [104, 112, 120, 128]
    for i in range(4):
        a.ds_read("ds_read_b128", ZR[i], 4, T[5], off=i * 2048)
        a.ds_read("ds_read_b128", ZR[i] + 4, 4, T[5], off=i * 2048 + 16)
    a.valu("v_mov_b32", T[6], "0x40000000")
    a.salu(f"s_and_b32 s38, s{S_T}, 1")
    a.salu("s_lshl_b32 s38, s38, 3")
    a.valu("v_cmp_gt_u32", "vcc", "s38", LANE2)
    a.valu("v_cndmask_b32", T[6], T[6], T[3], "vcc")
    a.wait(vm=0, lgkm=0)
    for i in range(4):
        for k in range(4):
            a.valu("v_lshlrev_b32", T[0], "16", XR[i] + k)
            a.valu("v_and_b32", T[1], "0xffff0000", XR[i] + k)
            a.valu("v_add_f32", T[0], T[0], ZR[i] + 2 * k)
            a.valu("v_add_f32", T[1], T[1], ZR[i] + 2 * k + 1)
            a.valu("v_cvt_pk_bf16_f32", XR[i] + k, T[0], T[1])
        a.bstore("buffer_store_dwordx4", XR[i], 4, T[3] if i < 3 else T[6], SRD_O, "s46", i * 1024)
    if INSTR:
        stamp(5)
        a.salu(f"s_cmp_lg_u32 s2, {INSTR}")
        a.salu("s_cbranch_scc1 M_END")
        a.salu("s_load_dwordx2 s[64:65], s[0:1], 80")
        a.wait(lgkm=0)
        srd(a, 64, 64, 256)
        a.salu(f"s_lshl_b32 s70, s{S_W}, 5")
        a.valu("v_mov_b32", T[0], "0")
        for k, sreg in enumerate((44, 45, 100, 101, 60, 61)):
            a.salu(f"s_sub_u32 s71, s{sreg}, s44")
            if k == 0:
                a.salu(f"s_mov_b32 s71, s{S_N}")
            a.valu("v_mov_b32", T[1], "s71")
            a.bstore("buffer_store_dword", T[1], 1, T[0], 64, "s70", 4 * k)
    a.label("M_END")
    a.salu("s_endpgm")
    return a.text()


def kd(name, vg, sg):
    return f""".amdhsa_kernel {name}
  .amdhsa_next_free_vgpr {vg}
  .amdhsa_next_free_sgpr {sg}
  .amdhsa_accum_offset {(vg + 3) // 4 * 4}
  .amdhsa_group_segment_fixed_size 0
  .amdhsa_kernarg_size 96
  .amdhsa_user_sgpr_count 2
  .amdhsa_user_sgpr_kernarg_segment_ptr 1
  .amdhsa_system_sgpr_workgroup_id_x 1
.end_amdhsa_kernel
"""

def main():
    out = HEADER.format(mainlds=MAINLDS)
    if PF:
        out = out.replace("grid=(255,1,1)", "grid=(505,1,1)")
    out += gen_part()
    out += gen_main()
    out += '.section .rodata,"a"\n.p2align 6\n'
    out += kd("gp_part_kernel", 64, 64)
    out += ".p2align 6\n"
    out += kd("gp_main_kernel", 256, 102)
    path = sys.argv[1] if len(sys.argv) > 1 else "gather_scatter__edge_featured_mpnn_gatedgcn__graph.s"
    open(path, "w").write(out)
    print("wrote", path, len(out), "bytes; main lds", MAINLDS)

if __name__ == "__main__":
    main()
```

```python
import sys, os
sys.path.insert(0, os.path.dirname(__file__))
from asmlib import Asm, vr, sr, R

N = 50000; E = 800000
G = 250; CH = 3200; NB = 250; NPB = 200
WS_REC = 0
WS_TAB = 6400000
WS_WT = 6668288
WS_SIZE = 8 << 20
INSTR = int(os.environ.get("INSTR", "0"))
NOCOMP = int(os.environ.get("NOCOMP", "0"))
NOMEM = int(os.environ.get("NOMEM", "0"))
PRIO = int(os.environ.get("PRIO", "1"))
ENT = int(os.environ.get("ENT", "0"))
BAL = int(os.environ.get("BAL", "1"))
PK = int(os.environ.get("PK", "0"))
K1ST = os.environ.get("K1ST", "")
K1DIRECT = int(os.environ.get("K1DIRECT", "0"))
PF = int(os.environ.get("PF", "0"))
FOLD = int(os.environ.get("FOLD", "1"))

HEADER = """; Kernarg layout for this problem (96 bytes, ptrs only, base s[0:1]):
;   offset  16: d_in[2] src  shape=(800000,) dtype=int32 strides=(4,) contiguous=True
; in LDS, gather x[src]/e_attr by LDS-DMA, MFMA gates, MFMA segment sums, epilogue.
; @launch kernel=gp_part_kernel grid=(255,1,1) block=(640,1,1) lds=27648
; @launch kernel=gp_main_kernel grid=(256,1,1) block=(512,1,1) lds={mainlds}
.amdgcn_target "amdgcn-amd-amdhsa--gfx950"
.text
"""

def srd(a, d, base, nbytes):
    a.salu(f"s_mov_b32 s{d}, s{base}")
    a.salu(f"s_and_b32 s{d+1}, s{base+1}, 0xffff")
    a.salu(f"s_mov_b32 s{d+2}, {nbytes}")
    a.salu(f"s_mov_b32 s{d+3}, 0x00020000")


def gen_part():
    a = Asm()
    a.raw(".globl gp_part_kernel\n.p2align 8\n.type gp_part_kernel,@function\ngp_part_kernel:")
    a.salu("s_cmp_gt_u32 s2, 254")
    a.salu("s_cbranch_scc1 P_PF" if PF else "s_cbranch_scc1 P_END")
    a.salu("s_load_dwordx4 s[4:7], s[0:1], 16")
    a.salu("s_load_dwordx2 s[8:9], s[0:1], 88")
    a.salu("s_cmp_ge_u32 s2, 250")
    a.salu("s_cbranch_scc1 P_WEIGHTS")
    a.valu("v_lshlrev_b32", 1, "2", 0)
    a.valu("v_mov_b32", 2, "0")
    a.valu("v_mov_b32", 4, "1")
    a.valu("v_cmp_gt_u32", "vcc", "256", 0)
    a.salu("s_and_saveexec_b64 s[30:31], vcc")
    a.ds_write("ds_write_b32", 1, 2)
    a.salu("s_mov_b64 exec, s[30:31]")
    a.wait(lgkm=0)
    srd(a, 12, 4, E * 4)
    srd(a, 16, 6, E * 4)
    srd(a, 20, 8, WS_SIZE)
    a.salu("s_mul_i32 s3, s2, 12800")
    a.valu("v_add_u32", 3, "s3", 1)
    a.salu("s_mov_b32 s40, 5120")
    a.salu("s_mov_b32 s41, 10240")
    locs = [("0", 0), ("0", 2560), ("s40", 0), ("s40", 2560), ("s41", 0)]
    for k in range(5):
        a.bload("buffer_load_dword", 10 + k, 1, 3, 16, locs[k][0], locs[k][1])
    for k in range(5):
        a.bload("buffer_load_dword", 15 + k, 1, 3, 12, locs[k][0], locs[k][1])
    a.salu("s_mov_b32 s42, 21913099")
    a.valu("v_lshlrev_b32", 9, "3", 3)
    a.barrier()
    a.wait(vm=5)
    for k in range(5):
        d = 10 + k
        a.valu("v_mul_hi_u32", 5, d, "s42")
        a.valu("v_mul_u32_u24", 6, "196", 5)
        a.valu("v_sub_u32", 6, d, 6)
        a.valu("v_lshlrev_b32", 20 + k, "2", 5)
        a.ds_add_rtn(25 + k, 20 + k, 4)
        a.valu("v_lshl_add_u32", 7, 6, "1", "1")
        a.valu("v_mul_u32_u24", 7, "1338", 7)
        a.valu("v_lshrrev_b32", 7, "16", 7)
        a.valu("v_mul_u32_u24", 8, "49", 7)
        a.valu("v_lshrrev_b32", 8, "1", 8)
        a.valu("v_sub_u32", 8, 6, 8)
        a.valu("v_lshlrev_b32", 10 + k, "16", 7)
        a.valu("v_add3_u32", 31 + 2 * k, 9, 8, "s%d" % (44 + k)) if False else None
        a.valu("v_add_u32", 31 + 2 * k, str(k * 20480), 9)
        a.valu("v_or_b32", 31 + 2 * k, 31 + 2 * k, 8)
    a.wait(vm=0)
    for k in range(5):
        a.valu("v_or_b32", 30 + 2 * k, 10 + k, 15 + k)
    a.wait(lgkm=0)
    a.barrier()
    a.valu("v_cmp_gt_u32", "vcc", "64", 0)
    a.salu("s_and_saveexec_b64 s[30:31], vcc")
    a.salu("s_cbranch_execz P_SCAN_DONE")
    a.valu("v_lshlrev_b32", 40, "4", 0)
    a.ds_read("ds_read_b128", 44, 4, 40)
    a.wait(lgkm=0)
    a.valu("v_add_u32", 48, 44, 45)
    a.valu("v_add_u32", 49, 48, 46)
    a.valu("v_add_u32", 50, 49, 47)
    a.valu("v_mov_b32", 51, 50)
    for sh in (1, 2, 4, 8):
        a.valu("v_add_u32_dpp", 51, 51, 51, mods=f"row_shr:{sh} row_mask:0xf bank_mask:0xf bound_ctrl:0", flags={'dpp': 1})
    a.valu("v_add_u32_dpp", 51, 51, 51, mods="row_bcast:15 row_mask:0xa bank_mask:0xf", flags={'dpp': 1})
    a.valu("v_add_u32_dpp", 51, 51, 51, mods="row_bcast:31 row_mask:0xc bank_mask:0xf", flags={'dpp': 1})
    a.valu("v_sub_u32", 52, 51, 50)
    a.valu("v_add_u32", 53, 52, 44)
    a.valu("v_add_u32", 54, 52, 48)
    a.valu("v_add_u32", 55, 52, 49)
    a.ds_write("ds_write_b128", 40, 52, 4, off=1024)
    a.salu("s_lshl_b32 s43, s2, 2")
    a.salu(f"s_add_u32 s43, s43, {WS_TAB}")
    a.valu("v_lshlrev_b32", 41, "12", 0)
    for j in range(4):
        a.bstore("buffer_store_dword", 52 + j, 1, 41, 20, "s43", j * 1024)
    a.valu("v_cmp_eq_u32", "vcc", "63", 0)
    a.salu("s_and_b64 exec, exec, vcc")
    a.salu("s_add_u32 s43, s43, 4096")
    a.bstore("buffer_store_dword", 51, 1, 41, 20, "s43", 0)
    a.wait(lgkm=0)
    a.label("P_SCAN_DONE")
    a.salu("s_mov_b64 exec, s[30:31]")
    a.barrier()
    for k in range(5):
        a.ds_read("ds_read_b32", 44 + k, 1, 20 + k, off=1024)
    a.wait(lgkm=0)
    if K1DIRECT:
        a.salu("s_mul_i32 s44, s2, 25600")
        for k in range(5):
            a.valu("v_add_u32", 5 + k, 44 + k, 25 + k)
            a.valu("v_lshlrev_b32", 5 + k, "3", 5 + k)
            a.bstore("buffer_store_dwordx2", 30 + 2 * k, 2, 5 + k, 20, "s44")
        a.salu("s_endpgm")
    for k in range(5):
        a.valu("v_add_u32", 5, 44 + k, 25 + k)
        a.valu("v_lshlrev_b32", 5, "3", 5)
        a.ds_write("ds_write_b64", 5, 30 + 2 * k, 2, off=2048)
    a.wait(lgkm=0)
    a.barrier()
    a.valu("v_lshlrev_b32", 5, "4", 0)
    a.salu("s_mul_i32 s44, s2, 25600")
    a.ds_read("ds_read_b128", 44, 4, 5, off=2048)
    a.ds_read("ds_read_b128", 48, 4, 5, off=2048 + 10240)
    a.valu("v_cmp_gt_u32", "vcc", "320", 0)
    a.salu("s_and_saveexec_b64 s[30:31], vcc")
    a.ds_read("ds_read_b128", 52, 4, 5, off=2048 + 20480)
    a.salu("s_mov_b64 exec, s[30:31]")
    a.salu("s_add_u32 s45, s44, 10240")
    a.salu("s_add_u32 s46, s44, 20480")
    a.wait(lgkm=2)
    a.bstore("buffer_store_dwordx4", 44, 4, 5, 20, "s44", extra=K1ST)
    a.wait(lgkm=1)
    a.bstore("buffer_store_dwordx4", 48, 4, 5, 20, "s45", extra=K1ST)
    a.wait(lgkm=0)
    a.salu("s_and_saveexec_b64 s[30:31], vcc")
    a.bstore("buffer_store_dwordx4", 52, 4, 5, 20, "s46", extra=K1ST)
    a.salu("s_endpgm")

    a.label("P_WEIGHTS")
    a.salu("s_sub_u32 s3, s2, 250")
    a.salu("s_lshl_b32 s40, s3, 13")
    a.salu(f"s_add_u32 s40, s40, {WS_WT}")
    a.salu("s_mov_b32 s41, 32")
    a.salu("s_cmp_eq_u32 s3, 1")
    a.salu("s_cselect_b32 s41, 40, s41")
    a.salu("s_cmp_eq_u32 s3, 2")
    a.salu("s_cselect_b32 s41, 64, s41")
    a.salu("s_cmp_eq_u32 s3, 3")
    a.salu("s_cselect_b32 s41, 56, s41")
    a.salu("s_cmp_eq_u32 s3, 4")
    a.salu("s_cselect_b32 s41, 48, s41")
    a.salu("s_movk_i32 s42, 0x2000")
    a.salu("s_cselect_b32 s42, 2048, s42")
    a.salu("s_load_dwordx2 s[12:13], s[0:1], s41")
    a.wait(lgkm=0)
    srd(a, 20, 8, WS_SIZE)
    srd(a, 28, 12, 0)
    a.salu("s_mov_b32 s30, s42")
    for j in range(7):
        a.valu("v_add_u32", 1, str(640 * j), 0)
        a.valu("v_lshlrev_b32", 2, "1", 1)
        a.bload("buffer_load_ushort", 10 + j, 1, 2, 28)
        a.valu("v_lshrrev_b32", 3, "10", 1)
        a.valu("v_bfe_u32", 4, 1, "5", "1")
        a.valu("v_lshl_add_u32", 3, 3, "1", 4)
        a.valu("v_bfe_u32", 4, 1, "9", "1")
        a.valu("v_lshl_add_u32", 3, 3, "1", 4)
        a.valu("v_and_b32", 4, "31", 1)
        a.valu("v_lshl_add_u32", 3, 3, "5", 4)
        a.valu("v_bfe_u32", 4, 1, "6", "3")
        a.valu("v_lshl_add_u32", 3, 3, "3", 4)
        a.valu("v_lshlrev_b32", 3, "1", 3)
        a.valu("v_mov_b32", 5, "0x40000000")
        a.valu("v_cmp_gt_u32", "vcc", "s42", 2)
        a.valu("v_cndmask_b32", 20 + j, 5, 3, "vcc")
    a.wait(vm=0)
    if FOLD:
        a.salu("s_mov_b32 s44, 1.0")
        a.salu("s_cmp_eq_u32 s3, 1")
        a.salu("s_cselect_b32 s44, 0xbfb8aa3b, s44")
        a.salu("s_cmp_eq_u32 s3, 4")
        a.salu("s_cselect_b32 s44, 0xbfb8aa3b, s44")
        for j in range(7):
            a.valu("v_lshlrev_b32", 10 + j, "16", 10 + j)
            a.valu("v_mul_f32", 10 + j, "s44", 10 + j)
            a.valu("v_cvt_pk_bf16_f32", 10 + j, 10 + j, 10 + j)
    for j in range(7):
        a.bstore("buffer_store_short", 10 + j, 1, 20 + j, 20, "s40")
    a.label("P_END")
    a.salu("s_endpgm")
    if PF:
        a.label("P_PF")
        a.salu("s_sub_u32 s3, s2, 255")
        a.salu("s_cmp_ge_u32 s3, 250")
        a.salu("s_cbranch_scc1 P_END")
        a.salu("s_load_dwordx4 s[4:7], s[0:1], 0")
        a.wait(lgkm=0)
        srd(a, 12, 4, N * 128)
        srd(a, 16, 6, E * 32)
        a.valu("v_lshlrev_b32", 1, "4", 0)
        a.salu("s_mul_i32 s20, s3, 102400")
        for j in range(10 if PF == 1 else 0):
            a.bload("buffer_load_dwordx4", 4 + 4 * j, 4, 1, 16, "s20")
            a.salu("s_add_u32 s20, s20, 10240")
        a.salu("s_mul_i32 s20, s3, 25600")
        for j in range(3):
            a.bload("buffer_load_dwordx4", 44 + 4 * j, 4, 1, 12, "s20")
            a.salu("s_add_u32 s20, s20, 10240")
        a.wait(vm=0)
        a.salu("s_endpgm")
    return a.text()


CAP = 250 * 32 + 256
XSTG = 0
ESTG = 65536
SRC16 = 81920
DLS = SRC16 + CAP * 2
EOFF = DLS + CAP * 2
CNT = EOFF + CAP * 4
TC = CAP // 8
BASE = CNT + 512
PROG = CNT + 1024
FLAG = CNT + 1088
TBL = CNT + 1152
NZERO = 288
WUL = TBL + 2048
MAINLDS = WUL + 8192
WVL = DLS
WTMP = SRC16

TID = 0
T = list(range(2, 9))
VTB = 9
IDB = [10, 100]
SWZ = [14, 15, 1, 31]
EHALF = 16
VA = [17, 18, 19, 20]
VE, VPROG, VEM, VSRC, VEO = 21, 22, 23, 24, 25
PS, PE, DM, TOH = 26, 28, 29, 30
SD = 32
X = [40, 44, 48, 52]
EOP = 56
OH = [60, 64]
GG, HH = 68, 84
DEN = [104, 120]
NUM = [136, 152]
WB = {(ks, c): 168 + (ks * 2 + c) * 4 for ks in range(4) for c in range(2)}
GB = 200
WVB = [216, 220, 224, 228]
WC = [232, 236]
AT = {(s, c): 240 + (s * 2 + c) * 4 for s in range(2) for c in range(2)}
SRD_X, SRD_E, SRD_O, SRD_W = 12, 16, 20, 24
S_W, S_ROUND, S_MORE, S_C128 = 28, 29, 30, 31
S_I, S_N = 32, 33
S_MX, S_ME = 36, 37
S_M32 = 59
S_DONE, S_STEP = 34, 35
S_T = 48
PAIR = int(os.environ.get('PAIR', '1'))
SRT = os.environ.get('SRT', 'rot')
SMASK = 66


def dma_issue(a, ps, pe):
    a.valu("v_mad_u32_u16", T[0], ps, f"s{S_C128}", SWZ[0])
    a.valu("v_mad_u32_u16", T[1], ps, f"s{S_C128}", SWZ[1], mods="op_sel:[1,0,0,0]")
    a.valu("v_mad_u32_u16", T[2], ps + 1, f"s{S_C128}", SWZ[2])
    a.valu("v_mad_u32_u16", T[3], ps + 1, f"s{S_C128}", SWZ[3], mods="op_sel:[1,0,0,0]")
    a.valu("v_and_or_b32", T[4], pe, f"s{S_M32}", EHALF)
    if NOMEM:
        for j in range(5):
            a.valu("v_and_b32", T[j], "0x3ff", T[j])
    for j in range(4):
        if j == 0:
            a.m0(f"s_mov_b32 m0, s{S_MX}")
        else:
            a.m0(f"s_add_u32 m0, s{S_MX}, {1024*j}")
        a.bload_lds(T[j], SRD_X)
    a.m0(f"s_mov_b32 m0, s{S_ME}")
    a.bload_lds(T[4], SRD_E, extra=" nt" if ENT else "")


def gen_main():
    a = Asm()
    def stamp(k):
        if INSTR:
            a.salu("s_memtime s[98:99]")
            a.wait(lgkm=0)
            a.salu(f"s_mov_b32 s{(44, 45, 100, 101, 60, 61)[k]}, s98")
    a.raw(".globl gp_main_kernel\n.p2align 8\n.type gp_main_kernel,@function\ngp_main_kernel:")
    a.salu("s_cmp_ge_u32 s2, 256")
    a.salu("s_cbranch_scc1 M_END")
    a.salu("s_and_b32 s3, s2, 7")
    a.salu("s_lshl_b32 s3, s3, 5")
    a.salu("s_lshr_b32 s2, s2, 3")
    a.salu("s_add_u32 s2, s2, s3")
    a.salu("s_load_dwordx2 s[10:11], s[0:1], 88")
    a.salu("s_load_dwordx4 s[4:7], s[0:1], 0")
    a.salu("s_load_dwordx2 s[8:9], s[0:1], 72")
    stamp(0)
    LANE, VQ, VM, VHH, VW, VR = 160, 161, 162, 163, 164, 165
    a.valu("v_and_b32", LANE, "63", TID)
    a.valu("v_lshrrev_b32", T[0], "6", TID)
    a.valu("v_readfirstlane_b32", f"s{S_W}", T[0], flags={'readlane': 1})
    a.valu("v_lshlrev_b32", VW, "4", LANE)
    a.valu("v_lshrrev_b32", VQ, "4", LANE)
    a.valu("v_lshrrev_b32", VR, "3", LANE)
    a.salu(f"s_mov_b32 s{S_ROUND}, 0")
    a.salu(f"s_mov_b32 s{S_DONE}, 0")
    a.salu(f"s_mov_b32 s{S_STEP}, 32")
    a.salu(f"s_lshl_b32 s{S_MX}, s{S_W}, 13")
    a.salu("s_mul_i32 s42, s2, 196")
    a.salu(f"s_mul_i32 s43, s{S_W}, 49")
    a.salu("s_lshr_b32 s43, s43, 1")
    a.salu("s_add_u32 s42, s42, s43")
    a.salu("s_lshl_b32 s46, s42, 7")
    a.valu("v_and_b32", T[2], "7", LANE)
    a.valu("v_and_b32", T[3], "1", VQ)
    a.valu("v_lshlrev_b32", T[3], "2", T[3])
    a.valu("v_xor_b32", T[3], T[2], T[3])
    a.valu("v_lshlrev_b32", SWZ[0], "4", T[3])
    for j in range(1, 4):
        a.valu("v_xor_b32", SWZ[j], str(16 * j), SWZ[0])
    a.wait(lgkm=0)
    srd(a, SRD_W, 10, WS_SIZE)
    srd(a, SRD_X, 4, N * 128)

    def xtile_dma(vr_):
        a.valu("v_and_b32", T[0], "2", vr_)
        a.valu("v_lshlrev_b32", T[0], "3", T[0])
        a.valu("v_and_b32", T[1], "1", vr_)
        a.valu("v_lshl_add_u32", T[0], T[1], "3", T[0])
        a.valu("v_lshrrev_b32", T[1], "2", vr_)
        a.valu("v_lshl_add_u32", T[0], T[1], "2", T[0])
        a.valu("v_lshlrev_b32", T[0], "7", T[0])
        for j in range(4):
            a.valu("v_add_u32", T[1 + j], T[0], SWZ[j])
        for j in range(4):
            a.salu(f"s_add_u32 s38, s46, {128 * j}")
            if j == 0:
                a.m0(f"s_mov_b32 m0, s{S_MX}")
            else:
                a.m0(f"s_add_u32 m0, s{S_MX}, {1024*j}")
            a.bload_lds(T[1 + j], SRD_X, "s38")

    REC = 40; RANK = 72; BS = 88
    REM = [32, 33, 34, 35]; ROF = [36, 37, 38, 39]
    a.label("M_ROUND")
    a.valu("v_lshrrev_b32", T[0], "3", TID)
    a.valu("v_lshlrev_b32", T[1], "2", T[0])
    a.salu("s_lshl_b32 s38, s2, 10")
    a.salu(f"s_add_u32 s38, s38, {WS_TAB}")
    for p_ in range(4):
        a.bload("buffer_load_dword", ROF[p_], 1, T[1], SRD_W, "s38", 256 * p_)
        a.bload("buffer_load_dword", REM[p_], 1, T[1], SRD_W, "s38", 1024 + 256 * p_)
    a.valu("v_lshrrev_b32", T[0], "3", TID)
    a.valu("v_and_b32", T[2], "7", TID)
    a.valu("v_lshlrev_b32", T[2], "1", T[2])
    a.valu("v_add_u32", T[6], f"s{S_DONE}", T[2])
    a.wait(vm=0)
    stamp(1)
    for p_ in range(4):
        a.valu("v_sub_u32", REM[p_], REM[p_], ROF[p_])
        if p_ == 3:
            a.valu("v_cmp_gt_u32", "vcc", str(250 - 192), T[0])
            a.valu("v_cndmask_b32", REM[p_], "0", REM[p_], "vcc")
        a.valu("v_subrev_u32", REM[p_], f"s{S_DONE}", REM[p_])
        if p_ == 0:
            a.valu("v_mov_b32", T[5], REM[p_])
        else:
            a.valu("v_max_i32", T[5], T[5], REM[p_])
        a.valu("v_min_i32", REM[p_], f"s{S_STEP}", REM[p_])
        a.valu("v_sub_u32", REM[p_], REM[p_], T[2])
        a.valu("v_add_u32", T[3], str(64 * p_), T[0])
        a.valu("v_mul_u32_u24", T[3], "3200", T[3])
        a.valu("v_add3_u32", T[3], T[3], ROF[p_], T[6])
        a.valu("v_lshlrev_b32", ROF[p_], "3", T[3])
    a.valu("v_cmp_lt_i32", "s[40:41]", f"s{S_STEP}", T[5])
    def recs():
        for p_ in range(4):
            for c_ in range(2):
                for h_ in range(2):
                    yield (p_ * 2 + c_) * 2 + h_, p_, 16 * c_ + h_
    for i, p_, K in recs():
        a.valu("v_cmp_lt_i32", f"s[{SMASK+2*i}:{SMASK+2*i+1}]", str(K), REM[p_])
    def mask(i, skip):
        a.salu(f"s_mov_b64 exec, s[{SMASK+2*i}:{SMASK+2*i+1}]")
        a.salu(f"s_cbranch_execz {skip}")
    for p_ in range(4):
        for c_ in range(2):
            lab = f"M_LD_{p_}{c_}"
            mask((p_ * 2 + c_) * 2, lab)
            a.bload("buffer_load_dwordx4", REC + (p_ * 2 + c_) * 4, 4, ROF[p_], SRD_W, "0", 128 * c_)
            a.label(lab)
    a.salu("s_mov_b64 exec, -1")
    a.salu(f"s_cmp_eq_u32 s{S_ROUND}, 0")
    a.salu("s_cbranch_scc0 M_NOSETUP")
    for kk in range(5):
        a.salu(f"s_add_u32 s39, s{S_W}, {8 * kk}")
        if kk == 4:
            a.salu("s_cmp_ge_u32 s39, 34")
            a.salu("s_cbranch_scc1 M_WL_SKIP")
        if kk == 3:
            a.salu("s_lshl_b32 s38, s39, 10")
            a.m0(f"s_add_u32 m0, s38, {WUL - 24576}")
        elif kk == 2:
            a.salu("s_lshl_b32 s38, s39, 10")
            a.m0(f"s_add_u32 m0, s38, {WVL - 16384}")
        else:
            a.salu(f"s_sub_u32 s38, s39, {8 if kk == 4 else 0}")
            a.salu("s_lshr_b32 s47, s38, 2")
            a.salu("s_lshl_b32 s47, s47, 13")
            a.salu("s_and_b32 s38, s38, 3")
            a.salu("s_lshl_b32 s38, s38, 10")
            a.salu("s_add_u32 s38, s38, s47")
            a.m0("s_add_u32 m0, s38, 4096")
        a.salu("s_lshl_b32 s39, s39, 10")
        a.salu(f"s_add_u32 s39, s39, {WS_WT}")
        a.bload_lds(VW, SRD_W, "s39")
    a.label("M_WL_SKIP")
    xtile_dma(VR)
    srd(a, SRD_E, 6, E * 32)
    srd(a, SRD_O, 8, N * 128)
    a.valu("v_and_b32", VM, "31", LANE)
    a.valu("v_lshrrev_b32", VHH, "5", LANE)
    a.valu("v_xor_b32", T[2], LANE, VQ)
    a.valu("v_and_b32", T[2], "1", T[2])
    a.valu("v_lshlrev_b32", EHALF, "4", T[2])
    a.valu("v_lshlrev_b32", VTB, "5", VHH)
    a.valu("v_add_u32", VTB, str(TBL), VTB)
    a.salu(f"s_mov_b32 s{S_C128}, 128")
    a.salu(f"s_mov_b32 s{S_M32}, 0xffffffe0")
    a.salu("s_mov_b32 s62, 0xbfb8aa3b")
    a.salu("s_mov_b32 s63, 0xbfb8aa3b")
    a.salu("s_mov_b32 s64, 1.0")
    a.salu("s_mov_b32 s65, 1.0")
    a.salu(f"s_lshl_b32 s{S_ME}, s{S_W}, 11")
    a.salu(f"s_add_u32 s{S_ME}, s{S_ME}, {ESTG}")
    a.salu(f"s_mov_b32 s52, {SRC16}")
    a.salu(f"s_mov_b32 s53, {DLS}")
    a.salu(f"s_mov_b32 s54, {EOFF}")
    a.valu("v_and_b32", T[0], "3", VM)
    a.valu("v_lshrrev_b32", T[1], "4", VM)
    a.valu("v_and_b32", T[2], "4", VM)
    a.valu("v_lshl_add_u32", T[2], T[0], "3", T[2])
    a.valu("v_lshl_add_u32", T[2], T[1], "1", T[2])
    a.valu("v_bfe_u32", T[3], VM, "3", "1")
    a.valu("v_add_u32", T[2], T[2], T[3])
    a.valu("v_lshl_add_u32", T[0], T[1], "2", T[0])
    a.valu("v_xor_b32", T[0], T[0], VHH)
    a.valu("v_lshlrev_b32", T[0], "4", T[0])
    a.valu("v_lshl_add_u32", T[0], T[2], "7", T[0])
    a.valu("v_add_u32", VA[0], f"s{S_MX}", T[0])
    for ks in range(1, 4):
        a.valu("v_xor_b32", VA[ks], str(32 * ks), VA[0])
    a.valu("v_xor_b32", T[0], T[3], VHH)
    a.valu("v_lshlrev_b32", T[0], "4", T[0])
    a.valu("v_lshl_add_u32", T[0], VM, "5", T[0])
    a.valu("v_add_u32", VE, f"s{S_ME}", T[0])
    a.valu("v_lshrrev_b32", T[0], "4", TID)
    a.valu("v_and_b32", T[1], "6", TID)
    a.valu("v_lshlrev_b32", T[1], "2", T[1])
    a.valu("v_bfe_u32", T[2], TID, "3", "1")
    a.valu("v_lshl_add_u32", T[1], T[2], "2", T[1])
    a.valu("v_and_b32", T[2], "1", TID)
    a.valu("v_lshl_add_u32", T[1], T[2], "1", T[1])
    a.valu("v_mov_b32", T[3], "0x3f80")
    a.valu("v_mov_b32", T[4], "0x3f800000")
    a.valu("v_cmp_eq_u32", "vcc", T[0], T[1])
    a.valu("v_cndmask_b32", T[3], "0", T[3], "vcc")
    a.valu("v_add_u32", T[1], "1", T[1])
    a.valu("v_cmp_eq_u32", "vcc", T[0], T[1])
    a.valu("v_cndmask_b32", T[4], "0", T[4], "vcc")
    a.valu("v_or_b32", T[3], T[3], T[4])
    a.valu("v_cmp_eq_u32", "vcc", "31", T[0])
    a.valu("v_mov_b32", T[4], "0")
    a.valu("v_cndmask_b32", T[3], T[3], T[4], "vcc")
    a.valu("v_lshlrev_b32", T[5], "2", TID)
    a.valu("v_add_u32", T[6], str(TBL), T[5])
    a.ds_write("ds_write_b32", T[6], T[3])
    a.valu("v_add_u32", T[5], str(CNT), T[5])
    a.valu("v_cmp_gt_u32", "vcc", str(NZERO), TID)
    a.salu("s_and_saveexec_b64 s[42:43], vcc")
    a.ds_write("ds_write_b32", T[5], T[4])
    a.salu("s_mov_b64 exec, s[42:43]")
    a.label("M_NOSETUP")
    a.valu("v_mov_b32", T[6], "1")
    a.salu(f"s_mov_b32 s38, {CNT}")
    a.salu(f"s_mov_b32 s47, {4 * TC}")
    a.salu("s_lshr_b32 s3, s2, 5")
    a.salu("s_lshl_b32 s3, s3, 1")
    a.valu("v_and_b32", T[5], "15", TID)
    a.valu("v_lshl_add_u32", T[5], T[5], "2", "s38")
    a.salu(f"s_cmp_eq_u32 s{S_ROUND}, 0")
    a.salu("s_cbranch_scc1 M_RW8")
    a.wait(vm=0)
    a.label("M_RW8")
    a.wait(vm=8, lgkm=0)
    a.barrier()
    stamp(2)
    for i, p_, K in recs():
        lab = f"M_AT_{i}"
        mask(i, lab)
        if SRT == 'src':
            a.valu("v_bfe_u32", T[0], REC + 2 * i, "12", "7")
            a.valu("v_lshl_add_u32", BS + i, T[0], "2", "s38")
        elif SRT == 'rot':
            a.valu("v_bfe_u32", T[0], REC + 2 * i, "16", "3")
            a.valu("v_lshrrev_b32", T[1], "12", REC + 2 * i)
            a.valu("v_add_u32", T[1], "s3", T[1])
            a.valu("v_and_b32", T[1], "15", T[1])
            a.valu("v_lshl_add_u32", T[0], T[0], "4", T[1])
            a.valu("v_lshl_add_u32", BS + i, T[0], "2", "s38")
        elif SRT == 'eid':
            a.valu("v_bfe_u32", T[0], REC + 2 * i, "16", "3")
            a.valu("v_lshrrev_b32", T[1], "21", REC + 2 * i + 1)
            a.valu("v_lshl_add_u32", T[0], T[0], "4", T[1])
            a.valu("v_lshl_add_u32", BS + i, T[0], "2", "s38")
        else:
            a.valu("v_bfe_u32", T[0], REC + 2 * i, "16", "3")
            a.valu("v_lshl_add_u32", BS + i, T[0], "6", T[5])
        a.ds_add_rtn(RANK + i, BS + i, T[6])
        a.label(lab)
    a.salu("s_mov_b64 exec, s[40:41]")
    a.salu("s_cbranch_execz M_AT_DONE")
    a.valu("v_mov_b32", T[0], str(FLAG))
    a.ds_write("ds_write_b32", T[0], T[6])
    a.label("M_AT_DONE")
    a.salu("s_mov_b64 exec, -1")
    a.wait(vm=0, lgkm=0)
    a.barrier()
    WA = {(ks, c): 112 + (ks * 2 + c) * 4 for ks in range(4) for c in range(2)}
    XT = [144, 148, 152, 156]
    a.salu(f"s_cmp_eq_u32 s{S_ROUND}, 0")
    a.salu("s_cbranch_scc0 M_NOWR")
    a.valu("v_and_b32", T[0], "63", TID)
    a.valu("v_lshlrev_b32", T[0], "4", T[0])
    def slot(k):
        return (k >> 2) * 8192 + 4096 + (k & 3) * 1024
    for dst, mb in ((WA, 0), (WB, 8)):
        for ks in range(4):
            for c in range(2):
                a.ds_read("ds_read_b128", dst[(ks, c)], 4, T[0], off=slot(mb + ks * 2 + c))
    for c in range(2):
        a.ds_read("ds_read_b128", WC[c], 4, T[0], off=slot(24 + c))
    a.label("M_NOWR")
    a.valu("v_and_b32", T[0], "63", TID)
    a.valu("v_lshl_add_u32", T[0], T[0], "2", "s38")
    a.ds_read("ds_read_b32", T[1], 1, T[0])
    a.ds_read("ds_read_b32", T[2], 1, T[0], off=256)
    a.valu("v_mov_b32", T[5], str(FLAG))
    a.ds_read("ds_read_b32", T[5], 1, T[5])
    a.valu("v_bfe_u32", T[6], TID, "4", "2")
    a.valu("v_mul_u32_u24", T[6], str(TC), T[6])
    a.wait(lgkm=0)
    a.valu("v_readfirstlane_b32", f"s{S_MORE}", T[5], flags={'readlane': 1})
    a.valu("v_mov_b32", T[3], T[1])
    a.valu("v_mov_b32", T[4], T[2])
    for sh in (1, 2, 4, 8):
        a.valu("v_add_u32_dpp", T[3], T[3], T[3], mods=f"row_shr:{sh} row_mask:0xf bank_mask:0xf bound_ctrl:0", flags={'dpp': 1})
        a.valu("v_add_u32_dpp", T[4], T[4], T[4], mods=f"row_shr:{sh} row_mask:0xf bank_mask:0xf bound_ctrl:0", flags={'dpp': 1})
    a.valu("v_max_u32", T[5], T[3], T[4])
    a.valu("v_cmp_lt_u32", "vcc", str(TC - 32), T[5])
    a.salu("s_cbranch_vccnz M_OVERFLOW")
    a.valu("v_sub_u32", T[1], T[3], T[1])
    a.valu("v_sub_u32", T[2], T[4], T[2])
    a.valu("v_add_u32", T[1], T[1], T[6])
    a.valu("v_add3_u32", T[2], T[2], T[6], "s47")
    a.ds_write("ds_write_b32", T[0], T[1], off=BASE - CNT)
    a.ds_write("ds_write_b32", T[0], T[2], off=BASE - CNT + 256)
    a.salu(f"s_and_b32 s55, s{S_ROUND}, 0x7fffffff")
    a.salu("s_cmp_eq_u32 s55, 0")
    a.salu("s_cbranch_scc0 M_NOASSIGN")
    a.salu(f"s_mov_b32 s{S_T}, s{S_W}")
    if PAIR:
        a.valu("v_and_b32", T[5], "15", TID)
        a.valu("v_cmp_eq_u32", "vcc", "15", T[5])
        a.valu("v_bfe_u32", T[5], TID, "4", "2")
        a.valu("v_lshlrev_b32", T[5], "2", T[5])
        a.valu("v_add_u32", T[5], str(FLAG + 16), T[5])
        a.salu("s_mov_b64 exec, vcc")
        a.ds_write("ds_write_b32", T[5], T[3])
        a.ds_write("ds_write_b32", T[5], T[4], off=16)
        a.salu("s_mov_b64 exec, -1")
        a.valu("v_and_b32", T[5], "7", TID)
        a.valu("v_lshlrev_b32", T[6], "2", T[5])
        a.valu("v_add_u32", T[6], str(FLAG + 16), T[6])
        a.wait(lgkm=0)
        a.ds_read("ds_read_b32", T[6], 1, T[6])
        a.wait(lgkm=0)
        a.valu("v_lshl_or_b32", T[6], T[6], "3", T[5])
        a.valu("v_mov_b32", T[5], "0")
        for j in range(8):
            a.valu("v_readlane_b32", "s55", T[6], str(j), flags={'readlane': 1})
            a.valu("v_cmp_gt_u32", "vcc", "s55", T[6])
            a.valu("v_addc_co_u32", T[5], "vcc", "0", T[5], "vcc", sw=[106, 107])
        a.salu(f"s_sub_u32 s55, 11, s{S_W}")
        a.salu(f"s_cmp_lt_u32 s{S_W}, 4")
        a.salu(f"s_cselect_b32 s55, s{S_W}, s55")
        a.valu("v_cmp_eq_u32", "vcc", "s55", T[5])
        a.salu(f"s_ff1_i32_b64 s{S_T}, vcc")
    a.salu("s_mul_i32 s42, s2, 196")
    a.salu(f"s_mul_i32 s43, s{S_T}, 49")
    a.salu("s_lshr_b32 s43, s43, 1")
    a.salu("s_add_u32 s42, s42, s43")
    a.salu("s_lshl_b32 s46, s42, 7")
    a.salu(f"s_sub_u32 s55, s{S_T}, s{S_W}")
    a.salu("s_lshl_b32 s55, s55, 13")
    for ks in range(4):
        a.valu("v_add_u32", T[5], "s55", VA[ks])
        a.ds_read("ds_read_b128", XT[ks], 4, T[5])
    a.label("M_NOASSIGN")
    a.salu(f"s_and_b32 s55, s{S_T}, 3")
    a.salu("s_lshl_b32 s55, s55, 4")
    a.salu("s_add_u32 s55, s55, 15")
    a.valu("v_readlane_b32", "s51", T[3], "s55", flags={'readlane': 1})
    a.valu("v_readlane_b32", "s56", T[4], "s55", flags={'readlane': 1})
    a.salu(f"s_cmp_ge_u32 s{S_T}, 4")
    a.salu("s_cselect_b32 s51, s56, s51")
    a.salu("s_add_u32 s50, s51, 31")
    a.salu("s_and_b32 s50, s50, 0xffffffe0")
    a.salu(f"s_mul_i32 s49, s{S_T}, {TC}")
    a.wait(lgkm=0)
    for i, p_, K in recs():
        lab = f"M_BS_{i}"
        mask(i, lab)
        a.ds_read("ds_read_b32", BS + i, 1, BS + i, off=BASE - CNT)
        a.label(lab)
    a.salu("s_mov_b64 exec, -1")

    def place(pos, w0, w1, dl):
        a.valu("v_lshl_add_u32", T[4], pos, "1", "s52")
        a.ds_write("ds_write_b16", T[4], w0)
        a.valu("v_lshl_add_u32", T[6], pos, "2", "s54")
        a.ds_write("ds_write_b32", T[6], w1)

    a.valu("v_and_b32", T[3], "63", TID)
    a.salu("s_sub_u32 s55, s50, s51")
    a.salu("s_add_u32 s56, s49, s51")
    a.valu("v_cmp_gt_u32", "vcc", "s55", T[3])
    a.valu("v_add_u32", T[3], "s56", T[3])
    a.valu("v_mov_b32", T[0], "0")
    a.valu("v_mov_b32", T[1], "31")
    a.salu("s_mov_b64 exec, vcc")
    place(T[3], T[0], T[1], T[1])
    a.salu("s_mov_b64 exec, -1")
    a.wait(lgkm=0)
    for i, p_, K in recs():
        lab = f"M_PL_{i}"
        mask(i, lab)
        a.valu("v_add_u32", T[3], BS + i, RANK + i)
        place(T[3], REC + 2 * i, REC + 2 * i + 1, T[5])
        a.label(lab)
    a.salu("s_mov_b64 exec, -1")
    a.salu(f"s_lshr_b32 s{S_N}, s50, 5")
    a.salu(f"s_mov_b32 s{S_I}, 0")
    a.valu("v_and_b32", T[1], "63", TID)
    a.salu("s_lshl_b32 s55, s49, 1")
    a.salu("s_add_u32 s56, s55, s52")
    a.valu("v_lshrrev_b32", T[0], "3", T[1])
    a.valu("v_lshl_add_u32", VSRC, T[0], "3", "s56")
    a.salu("s_lshl_b32 s56, s49, 2")
    a.salu("s_add_u32 s56, s56, s54")
    def pi_of(dst, p):
        a.valu("v_and_b32", dst, "3", p)
        a.valu("v_lshrrev_b32", T[5], "1", p)
        a.valu("v_and_or_b32", dst, T[5], "12", dst)
        a.valu("v_lshlrev_b32", T[5], "2", p)
        a.valu("v_and_or_b32", dst, T[5], "16", dst)
    a.valu("v_lshrrev_b32", T[0], "1", T[1])
    pi_of(T[2], T[0])
    a.valu("v_lshl_add_u32", VEO, T[2], "2", "s56")
    a.valu("v_and_b32", T[0], "31", T[1])
    pi_of(T[2], T[0])
    a.valu("v_lshl_add_u32", VEM, T[2], "2", "s56")
    a.wait(lgkm=0)
    a.barrier()
    stamp(3)
    a.ds_read("ds_read_b64", PS, 2, VSRC)
    a.ds_read("ds_read_b32", PE, 1, VEO)
    a.ds_read("ds_read_b64", SD, 2, VSRC, off=64)
    a.ds_read("ds_read_b32", SD + 2, 1, VEO, off=128)
    a.ds_read("ds_read_b32", DM, 1, VEM)
    a.valu("v_and_b32", T[0], "31", TID)
    a.valu("v_lshl_add_u32", T[0], T[0], "6", VTB)
    a.ds_read("ds_read_b128", IDB[0], 4, T[0])
    a.ds_read("ds_read_b128", IDB[1], 4, T[0], off=16)
    a.wait(lgkm=0)
    a.salu(f"s_cmp_eq_u32 s{S_N}, 0")
    a.salu("s_cbranch_scc1 M_PRE_DONE")
    dma_issue(a, PS, PE)
    a.salu(f"s_cmp_eq_u32 s{S_N}, 1")
    a.salu("s_cbranch_scc1 M_PRE_DONE")
    a.salu(f"s_xor_b32 s{S_MX}, s{S_MX}, 4096")
    a.salu(f"s_xor_b32 s{S_ME}, s{S_ME}, 1024")
    dma_issue(a, SD, SD + 2)
    a.salu(f"s_xor_b32 s{S_MX}, s{S_MX}, 4096")
    a.salu(f"s_xor_b32 s{S_ME}, s{S_ME}, 1024")
    a.label("M_PRE_DONE")
    a.valu("v_add_u32", VSRC, "128", VSRC)
    a.valu("v_add_u32", VEO, "256", VEO)
    a.valu("v_add_u32", VEM, "128", VEM)
    a.salu(f"s_and_b32 s38, s{S_ROUND}, 0x7fffffff")
    a.salu("s_cmp_eq_u32 s38, 0")
    a.salu("s_cbranch_scc0 M_NOAT")
    for c, o in ((0, GG), (1, HH)):
        for ks in range(4):
            a.mfma32(o, XT[ks], WA[(ks, c)], None if ks == 0 else o)
    for c, o in ((0, GG), (1, HH)):
        if FOLD:
            for k in range(16):
                a.valu("v_mul_f32", o + k, "s62", o + k)
        for s in range(2):
            for k in range(4):
                a.valu("v_cvt_pk_bf16_f32", AT[(s, c)] + k, o + 8 * s + 2 * k, o + 8 * s + 2 * k + 1)
    for r in range(104, 168):
        a.valu("v_mov_b32", r, "0")
    a.label("M_NOAT")
    a.salu(f"s_lshl_b32 s57, s{S_W}, 2")
    a.salu(f"s_add_u32 s57, s57, {PROG}")
    a.valu("v_mov_b32", VPROG, "s57")
    a.fence()
    a.salu(f"s_cmp_ge_u32 s{S_I}, s{S_N}")
    a.salu("s_cbranch_scc1 M_LOOP_END")

    def operand_reads(tag):
        a.salu(f"s_add_u32 s39, s38, 1")
        a.salu(f"s_cmp_lt_u32 s39, s{S_N}")
        a.salu(f"s_cbranch_scc1 M_W5{tag}")
        a.wait(vm=0)
        a.salu(f"s_branch M_W0{tag}")
        a.label(f"M_W5{tag}")
        a.wait(vm=5)
        a.label(f"M_W0{tag}")
        a.valu("v_and_b32", T[0], "31", DM)
        a.valu("v_lshl_add_u32", TOH, T[0], "6", VTB)
        a.ds_read("ds_read_b128", OH[0], 4, TOH)
        a.ds_read("ds_read_b128", OH[1], 4, TOH, off=16)
        for ks in range(4):
            a.ds_read("ds_read_b128", X[ks], 4, VA[ks])
        a.ds_read("ds_read_b128", EOP, 4, VE)
        a.ds_read("ds_read_b64", PS, 2, VSRC)
        a.ds_read("ds_read_b32", PE, 1, VEO)
        a.ds_read("ds_read_b32", DM, 1, VEM)
        if BAL:
            a.salu(f"s_sub_u32 s57, s{S_N}, s38")
            a.valu("v_mov_b32", T[1], "s57")
            a.valu("v_xor_b32", T[2], "16", VPROG)
            a.ds_write("ds_write_b32", VPROG, T[1])
            a.ds_read("ds_read_b32", T[5], 1, T[2])
        for ks in range(4):
            a.valu("v_xor_b32", VA[ks], "0x1000", VA[ks])
        a.valu("v_xor_b32", VE, "0x400", VE)
        a.valu("v_add_u32", VSRC, "64", VSRC)
        a.valu("v_add_u32", VEO, "0x80", VEO)
        a.valu("v_add_u32", VEM, "0x80", VEM)

    VWV = TOH
    def wv_reads(c):
        a.valu("v_and_b32", T[6], "63", TID)
        a.valu("v_lshlrev_b32", T[6], "4", T[6])
        a.valu("v_add_u32", T[6], str(WVL), T[6])
        for ks in range(4):
            a.ds_read("ds_read_b128", WVB[ks], 4, T[6], off=(ks * 2 + c) * 1024)

    def g_mfmas(c):
        g = GG if c == 0 else GB
        l = [lambda ks=ks: a.mfma32(g, X[ks], WB[(ks, c)], None if ks == 0 else g) for ks in range(4)]
        l.append(lambda: a.mfma32(g, EOP, WC[c], g))
        l.append(lambda: a.mfma32(g, OH[0], AT[(0, c)], g))
        l.append(lambda: a.mfma32(g, OH[1], AT[(1, c)], g))
        return l
    def h_mfmas():
        return [lambda ks=ks: a.mfma32(HH, X[ks], WVB[ks], None if ks == 0 else HH) for ks in range(4)]
    def seg_mfmas(c):
        g = GG if c == 0 else GB
        return [lambda: a.mfma32(DEN[c], SD, g, DEN[c]), lambda: a.mfma32(DEN[c], SD + 4, g + 4, DEN[c]),
                lambda: a.mfma32(NUM[c], SD, HH, NUM[c]), lambda: a.mfma32(NUM[c], SD + 4, HH + 4, NUM[c])]
    def valu_ops(c):
        g = GG if c == 0 else GB
        v = []
        if not FOLD:
            v += [lambda k=k: a.valu("v_mul_f32", g + k, "s62", g + k) for k in range(16)]
        v += [lambda k=k: a.valu("v_exp_f32", g + k, g + k, trans=True) for k in range(16)]
        v += [lambda k=k: a.valu("v_add_f32", g + k, "1.0", g + k) for k in range(16)]
        v += [lambda k=k: a.valu("v_rcp_f32", g + k, g + k, trans=True) for k in range(16)]
        v += [lambda k=k: a.valu("v_mul_f32", HH + k, g + k, HH + k) for k in range(16)]
        v += [lambda k=k: a.valu("v_cvt_pk_bf16_f32", g + k, g + 2 * k, g + 2 * k + 1) for k in range(8)]
        v += [lambda k=k: a.valu("v_cvt_pk_bf16_f32", HH + k, HH + 2 * k, HH + 2 * k + 1) for k in range(8)]
        return v
    if NOCOMP:
        _vo = valu_ops
        valu_ops = lambda c: [(lambda: None)] * len(_vo(c))
        g_mfmas = lambda c: [(lambda: None)] * 7
        h_mfmas = lambda: [(lambda: None)] * 4
        seg_mfmas = lambda c: [(lambda: None)] * 4
    def run_stage(v, events):
        for i in range(len(v) + 1):
            for e in events.get(i, []):
                e()
            if i < len(v):
                v[i]()

    a.salu(f"s_mov_b32 s38, s{S_I}")
    operand_reads("P")
    wv_reads(0)
    for k in range(8):
        a.valu("v_mov_b32", SD + k, "0")
        a.valu("v_mov_b32", GB + k, "0")
        a.valu("v_mov_b32", HH + k, "0")
    a.wait(lgkm=0)
    for m in g_mfmas(0):
        m()
    a.fence()

    a.label("M_GROUP")
    def prio():
        if BAL:
            a.valu("v_readfirstlane_b32", "s58", T[5], flags={'readlane': 1})
            a.salu("s_cmp_ge_u32 s57, s58")
            a.salu("s_cbranch_scc1 M_PHI")
            a.salu("s_setprio 0")
            a.salu("s_branch M_PDONE")
            a.label("M_PHI")
            a.salu("s_setprio 1")
            a.label("M_PDONE")
    def dma_block():
        a.salu(f"s_add_u32 s38, s{S_I}, 2")
        a.salu(f"s_cmp_lt_u32 s38, s{S_N}")
        a.salu("s_cbranch_scc0 M_NODMA")
        dma_issue(a, PS, PE)
        a.salu("s_branch M_DMAD")
        a.label("M_NODMA")
        a.salu(f"s_cmp_eq_u32 s38, s{S_N}")
        a.salu("s_cbranch_scc0 M_DMAD")
        a.salu(f"s_cmp_eq_u32 s{S_MORE}, 0")
        a.salu("s_cbranch_scc0 M_DMAD")
        a.valu("v_bfe_u32", T[6], TID, "3", "3")
        xtile_dma(T[6])
        a.label("M_DMAD")
        a.salu(f"s_xor_b32 s{S_MX}, s{S_MX}, 4096")
        a.salu(f"s_xor_b32 s{S_ME}, s{S_ME}, 1024")
    def cvt_s():
        for k in range(8):
            a.valu("v_cvt_pk_bf16_f32", SD + k, HH + 2 * k, HH + 2 * k + 1)
    def next_ops():
        a.salu(f"s_add_u32 s38, s{S_I}, 1")
        a.salu(f"s_cmp_lt_u32 s38, s{S_N}")
        a.salu("s_cbranch_scc0 M_NOPF")
        operand_reads("L")
        a.label("M_NOPF")
    SCH = os.environ.get("SCH", "0")
    P = {
      "0": dict(a_seg=(0, 3, 6, 10), a_s=(13, 16), a_dma=20, a_cvt=30, a_h=(31, 35, 38, 41), a_wv=43, a_g=(45, 49, 53, 57, 61, 65, 70),
                b_seg=(0, 2, 5, 7), b_h=(10, 13, 16, 20), b_rd=21, b_g=(38, 42, 46, 50, 55, 59, 63)),
      "1": dict(a_seg=(0, 2, 4, 6), a_s=(8, 10), a_dma=12, a_cvt=24, a_h=(26, 29, 32, 35), a_wv=36, a_g=(38, 43, 48, 53, 58, 63, 68),
                b_seg=(0, 2, 4, 6), b_h=(8, 10, 12, 14), b_rd=15, b_g=(40, 44, 48, 52, 56, 60, 64)),
      "2": dict(a_seg=(0, 4, 8, 12), a_s=(16, 20), a_dma=22, a_cvt=34, a_h=(35, 38, 41, 44), a_wv=45, a_g=(47, 51, 55, 59, 63, 67, 70),
                b_seg=(0, 3, 6, 9), b_h=(12, 15, 18, 21), b_rd=22, b_g=(44, 48, 52, 56, 60, 64, 68)),
      "3": dict(a_seg=(0, 2, 4, 6), a_s=(8, 10), a_dma=12, a_cvt=24, a_h=(25, 27, 29, 31), a_wv=32, a_g=(34, 39, 44, 49, 54, 59, 64),
                b_seg=(0, 2, 4, 6), b_h=(8, 10, 12, 14), b_rd=15, b_g=(34, 39, 44, 49, 54, 59, 64)),
    }[SCH]
    ev = {}
    def at(pos, f):
        ev.setdefault(pos, []).append(f)
    at(0, prio)
    sg = seg_mfmas(1)
    for k in range(4):
        at(P['a_seg'][k], sg[k])
    at(P['a_s'][0], lambda: a.mfma32(HH, OH[0], IDB[0], None))
    at(P['a_s'][1], lambda: a.mfma32(HH, OH[1], IDB[1], HH))
    at(P['a_dma'], dma_block)
    at(P['a_cvt'], cvt_s)
    hm = h_mfmas()
    for k in range(4):
        at(P['a_h'][k], hm[k])
    at(P['a_wv'], lambda: wv_reads(1))
    gm = g_mfmas(1)
    for k in range(7):
        at(P['a_g'][k], gm[k])
    run_stage(valu_ops(0), ev)
    ev = {}
    sg = seg_mfmas(0)
    for k in range(4):
        at(P['b_seg'][k], sg[k])
    at(P['b_h'][0], lambda: a.wait(lgkm=0))
    hm = h_mfmas()
    for k in range(4):
        at(P['b_h'][k], hm[k])
    at(P['b_rd'], next_ops)
    at(P['b_rd'], lambda: wv_reads(0))
    at(P['b_g'][0], lambda: a.wait(lgkm=0))
    gm = g_mfmas(0)
    for k in range(7):
        at(P['b_g'][k], gm[k])
    run_stage(valu_ops(1), ev)
    a.salu(f"s_add_u32 s{S_I}, s{S_I}, 1")
    a.salu(f"s_cmp_lt_u32 s{S_I}, s{S_N}")
    a.salu("s_cbranch_scc1 M_GROUP")
    for m in seg_mfmas(1):
        m()

    a.label("M_LOOP_END")
    a.fence()
    if BAL:
        a.valu("v_mov_b32", T[1], "0")
        a.ds_write("ds_write_b32", VPROG, T[1])
        a.salu("s_setprio 0")
    stamp(4)
    a.salu(f"s_cmp_eq_u32 s{S_MORE}, 0")
    a.salu("s_cbranch_scc1 M_EPI")
    a.wait(vm=0, lgkm=0)
    a.barrier()
    a.valu("v_mov_b32", T[4], "0")
    a.valu("v_lshlrev_b32", T[5], "2", TID)
    a.valu("v_add_u32", T[5], str(CNT), T[5])
    a.valu("v_cmp_gt_u32", "vcc", str(NZERO), TID)
    a.salu("s_and_saveexec_b64 s[40:41], vcc")
    a.ds_write("ds_write_b32", T[5], T[4])
    a.salu("s_mov_b64 exec, s[40:41]")
    a.salu(f"s_add_u32 s{S_ROUND}, s{S_ROUND}, 1")
    a.salu(f"s_add_u32 s{S_DONE}, s{S_DONE}, s{S_STEP}")
    a.salu(f"s_and_b32 s38, s{S_N}, 1")
    a.salu("s_cmp_eq_u32 s38, 0")
    a.salu("s_cbranch_scc1 M_PAR_OK")
    for ks in range(4):
        a.valu("v_xor_b32", VA[ks], "0x1000", VA[ks])
    a.valu("v_xor_b32", VE, "0x400", VE)
    a.salu(f"s_xor_b32 s{S_MX}, s{S_MX}, 4096")
    a.salu(f"s_xor_b32 s{S_ME}, s{S_ME}, 1024")
    a.label("M_PAR_OK")
    a.wait(lgkm=0)
    a.fence()
    a.salu("s_branch M_ROUND")

    a.label("M_OVERFLOW")
    a.wait(vm=0, lgkm=0)
    a.barrier()
    a.valu("v_mov_b32", T[4], "0")
    a.valu("v_lshlrev_b32", T[5], "2", TID)
    a.valu("v_add_u32", T[5], str(CNT), T[5])
    a.valu("v_cmp_gt_u32", "vcc", str(NZERO), TID)
    a.salu("s_and_saveexec_b64 s[40:41], vcc")
    a.ds_write("ds_write_b32", T[5], T[4])
    a.salu("s_mov_b64 exec, s[40:41]")
    a.salu(f"s_mov_b32 s{S_STEP}, 4")
    a.salu(f"s_cmp_eq_u32 s{S_ROUND}, 0")
    a.salu("s_cbranch_scc0 M_OV2")
    a.salu(f"s_mov_b32 s{S_ROUND}, 0x80000000")
    a.label("M_OV2")
    a.wait(lgkm=0)
    a.fence()
    a.salu("s_branch M_ROUND")
    a.label("M_EPI")
    WU = {(ks, c): 40 + (ks * 2 + c) * 4 for ks in range(4) for c in range(2)}
    XE = [72, 76, 80, 84]
    XR = [88, 92, 96, 100]
    a.salu(f"s_cmp_ge_u32 s{S_N}, 2")
    a.salu("s_cbranch_scc1 M_EPI_HAVE")
    a.valu("v_bfe_u32", T[6], TID, "3", "3")
    xtile_dma(T[6])
    a.label("M_EPI_HAVE")
    LANE2, VM2, VHH2 = T[0], T[1], T[2]
    a.valu("v_and_b32", LANE2, "63", TID)
    a.valu("v_and_b32", VM2, "31", LANE2)
    a.valu("v_lshrrev_b32", VHH2, "5", LANE2)
    a.valu("v_lshlrev_b32", T[3], "4", LANE2)
    a.valu("v_add_u32", T[4], str(WUL), T[3])
    for ks in range(4):
        for c in range(2):
            a.ds_read("ds_read_b128", WU[(ks, c)], 4, T[4], off=(ks * 2 + c) * 1024)
    a.valu("v_lshrrev_b32", T[4], "3", LANE2)
    a.valu("v_and_b32", T[5], "3", T[4])
    a.valu("v_and_b32", T[6], "4", T[4])
    a.valu("v_lshl_add_u32", T[6], T[5], "3", T[6])
    a.valu("v_and_b32", T[4], "7", LANE2)
    a.valu("v_xor_b32", T[4], T[4], T[5])
    a.valu("v_lshlrev_b32", T[4], "4", T[4])
    a.valu("v_lshl_add_u32", T[4], T[6], "7", T[4])
    a.valu("v_add_u32", T[4], f"s{S_MX}", T[4])
    a.valu("v_xor_b32", T[5], "64", T[4])
    for c in range(2):
        for r in range(16):
            a.valu("v_add_f32", DEN[c] + r, "0x358637bd", DEN[c] + r)
    for c in range(2):
        for r in range(16):
            a.valu("v_rcp_f32", DEN[c] + r, DEN[c] + r, trans=True)
    for c in range(2):
        for r in range(16):
            a.valu("v_mul_f32", NUM[c] + r, NUM[c] + r, DEN[c] + r)
    a.wait(vm=0)
    for ks in range(4):
        a.ds_read("ds_read_b128", XE[ks], 4, VA[ks])
    a.ds_read("ds_read_b128", XR[0], 4, T[4])
    a.ds_read("ds_read_b128", XR[1], 4, T[4], off=128)
    a.ds_read("ds_read_b128", XR[2], 4, T[5], off=256)
    a.ds_read("ds_read_b128", XR[3], 4, T[5], off=384)
    a.wait(lgkm=0)
    for c in range(2):
        for ks in range(4):
            a.mfma32(NUM[c], XE[ks], WU[(ks, c)], NUM[c])
    a.salu(f"s_lshl_b32 s38, s{S_W}, 13")
    a.valu("v_lshlrev_b32", T[4], "10", VHH2)
    a.valu("v_lshl_add_u32", T[4], VM2, "2", T[4])
    a.valu("v_add_u32", T[4], "s38", T[4])
    a.valu("v_lshlrev_b32", T[5], "5", LANE2)
    a.valu("v_add_u32", T[5], "s38", T[5])
    for c in range(2):
        for r in range(16):
            if (r >> 2) == 3 and (r & 3) >= 1:
                continue
            a.valu("v_max_f32", NUM[c] + r, "0", NUM[c] + r)
            a.ds_write("ds_write_b32", T[4], NUM[c] + r, off=(8 * (r >> 2) + (r & 3)) * 256 + c * 128)
    a.wait(lgkm=0)
    ZR = [104, 112, 120, 128]
    for i in range(4):
        a.ds_read("ds_read_b128", ZR[i], 4, T[5], off=i * 2048)
        a.ds_read("ds_read_b128", ZR[i] + 4, 4, T[5], off=i * 2048 + 16)
    a.valu("v_mov_b32", T[6], "0x40000000")
    a.salu(f"s_and_b32 s38, s{S_T}, 1")
    a.salu("s_lshl_b32 s38, s38, 3")
    a.valu("v_cmp_gt_u32", "vcc", "s38", LANE2)
    a.valu("v_cndmask_b32", T[6], T[6], T[3], "vcc")
    a.wait(vm=0, lgkm=0)
    for i in range(4):
        for k in range(4):
            a.valu("v_lshlrev_b32", T[0], "16", XR[i] + k)
            a.valu("v_and_b32", T[1], "0xffff0000", XR[i] + k)
            a.valu("v_add_f32", T[0], T[0], ZR[i] + 2 * k)
            a.valu("v_add_f32", T[1], T[1], ZR[i] + 2 * k + 1)
            a.valu("v_cvt_pk_bf16_f32", XR[i] + k, T[0], T[1])
        a.bstore("buffer_store_dwordx4", XR[i], 4, T[3] if i < 3 else T[6], SRD_O, "s46", i * 1024)
    if INSTR:
        stamp(5)
        a.salu(f"s_cmp_lg_u32 s2, {INSTR}")
        a.salu("s_cbranch_scc1 M_END")
        a.salu("s_load_dwordx2 s[64:65], s[0:1], 80")
        a.wait(lgkm=0)
        srd(a, 64, 64, 256)
        a.salu(f"s_lshl_b32 s70, s{S_W}, 5")
        a.valu("v_mov_b32", T[0], "0")
        for k, sreg in enumerate((44, 45, 100, 101, 60, 61)):
            a.salu(f"s_sub_u32 s71, s{sreg}, s44")
            if k == 0:
                a.salu(f"s_mov_b32 s71, s{S_N}")
            a.valu("v_mov_b32", T[1], "s71")
            a.bstore("buffer_store_dword", T[1], 1, T[0], 64, "s70", 4 * k)
    a.label("M_END")
    a.salu("s_endpgm")
    return a.text()


def kd(name, vg, sg):
    return f""".amdhsa_kernel {name}
  .amdhsa_next_free_vgpr {vg}
  .amdhsa_next_free_sgpr {sg}
  .amdhsa_accum_offset {(vg + 3) // 4 * 4}
  .amdhsa_group_segment_fixed_size 0
  .amdhsa_kernarg_size 96
  .amdhsa_user_sgpr_count 2
  .amdhsa_user_sgpr_kernarg_segment_ptr 1
  .amdhsa_system_sgpr_workgroup_id_x 1
.end_amdhsa_kernel
"""

def main():
    out = HEADER.format(mainlds=MAINLDS)
    if PF:
        out = out.replace("grid=(255,1,1)", "grid=(505,1,1)")
    out += gen_part()
    out += gen_main()
    out += '.section .rodata,"a"\n.p2align 6\n'
    out += kd("gp_part_kernel", 64, 64)
    out += ".p2align 6\n"
    out += kd("gp_main_kernel", 256, 102)
    path = sys.argv[1] if len(sys.argv) > 1 else "gather_scatter__edge_featured_mpnn_gatedgcn__graph.s"
    open(path, "w").write(out)
    print("wrote", path, len(out), "bytes; main lds", MAINLDS)

if __name__ == "__main__":
    main()
```
